```python
import torch

def _softmax(x, axis=-1):
    return torch.softmax(x, dim=axis)
def _gelu(x):
    return torch.nn.functional.gelu(x, approximate="tanh")
def _silu(x):
    return torch.nn.functional.silu(x)
def _sigmoid(x):
    return torch.sigmoid(x)
def _layernorm(x, axis=-1, eps=1e-5):
    m = x.mean(dim=axis, keepdim=True)
    v = x.var(dim=axis, keepdim=True, unbiased=False)
    return (x - m) / torch.sqrt(v + eps)
def _scatter_add(tgt, idx, src, axis=0):
    return tgt.clone().index_add_(axis, idx, src)
def _segment_sum(src, seg, n):
    out = torch.zeros((n,) + src.shape[1:], dtype=src.dtype)
    return out.index_add_(0, seg, src)
def _pad(x, pw):
    flat = tuple(v for pair in reversed(pw) for v in pair)
    return torch.nn.functional.pad(x, flat)

kernel_name = 'standalone__glu_gated_geglu__sampling'

def setup_inputs():

    _w = (lambda a: (lambda t: t.to(torch.bfloat16) if t.is_floating_point() else t)(torch.as_tensor(a)))
    B, S, Dm, Df = 8, 16, 1024, 3584
    return {
        "x": _w((lambda *s: torch.randn(*s, dtype=torch.bfloat16) * 0.05)(B, S, Dm)),
        "w_gate": _w((lambda *s: torch.randn(*s, dtype=torch.bfloat16) * 0.05)(Dm, Df) * (Dm ** -0.5)),
        "w_up": _w((lambda *s: torch.randn(*s, dtype=torch.bfloat16) * 0.05)(Dm, Df) * (Dm ** -0.5)),
        "w_down": _w((lambda *s: torch.randn(*s, dtype=torch.bfloat16) * 0.05)(Df, Dm) * (Df ** -0.5)),
    }

def reference(x, w_gate, w_up, w_down):
    g = torch.einsum("bsd,df->bsf", x, w_gate)
    u = torch.einsum("bsd,df->bsf", x, w_up)
    h = _gelu(g) * u
    return torch.einsum("bsf,fd->bsd", h, w_down)
```

```python
KN = "standalone__glu_gated_geglu__sampling_kernel"
HEADER_COMMENT = """; Kernarg layout for this problem (56 bytes, ptrs only, base s[0:1]):
"""
X_BYTES = 128*1024*2
W_BYTES = 1024*3584*2
OUT_BYTES = 128*1024*2
WS_BYTES = 268435456

class Asm:
    def __init__(self):
        self.L = []
    def __call__(self, s):
        for line in s.strip("\n").split("\n"):
            line = line.rstrip()
            if line and not line.endswith(":") and not line.startswith("."):
                line = "  " + line.strip()
            self.L.append(line)
    def raw(self, s):
        self.L.append(s)
    def text(self):
        return "\n".join(self.L) + "\n"
    def srd(self, d, b, n):
        self(f"s_mov_b32 s{d}, s{b}\ns_and_b32 s{d+1}, s{b+1}, 0xffff\ns_mov_b32 s{d+2}, {n}\ns_mov_b32 s{d+3}, 0x20000")
    def kernel_start(self, name):
        self.raw(f".globl {name}")
        self.raw(".p2align 8")
        self.raw(f".type {name},@function")
        self.raw(f"{name}:")
    def descriptor(self, name, vgpr, accum, sgpr=102):
        self.raw(f""".p2align 6
.amdhsa_kernel {name}
  .amdhsa_next_free_vgpr {vgpr}
  .amdhsa_next_free_sgpr {sgpr}
  .amdhsa_accum_offset {accum}
  .amdhsa_group_segment_fixed_size 0
  .amdhsa_kernarg_size 56
  .amdhsa_user_sgpr_count 2
  .amdhsa_user_sgpr_kernarg_segment_ptr 1
  .amdhsa_system_sgpr_workgroup_id_x 1
  .amdhsa_float_denorm_mode_32 3
.end_amdhsa_kernel""")

import struct, math
def f32hex(x):
    return "0x%08x" % struct.unpack("<I", struct.pack("<f", x))[0]
GELU_C0 = -2.0*math.sqrt(2.0/math.pi)*math.log2(math.e)
GELU_C1 = GELU_C0*0.044715
```

```python
import sys
from common import *

H_OFF = 0
P_OFF = 1 << 20

def gelu_mul(A, g, u, t0, t1, sc0, sc1):
    pass

def k1(A, wflags="", rot=True):
    name = "p1_kernel"
    NSLOT = 5
    XB = NSLOT*16384
    XROW = 2064
    A.kernel_start(name)
    A("""
s_cmp_ge_u32 s2, 224
s_cbranch_scc1 L1_end
s_load_dwordx4 s[4:7], s[0:1], 0
s_load_dwordx2 s[8:9], s[0:1], 16
s_load_dwordx2 s[12:13], s[0:1], 48
s_and_b32 s3, s2, 7
s_lshr_b32 s14, s2, 3
v_lshrrev_b32 v1, 6, v0
v_and_b32 v2, 63, v0
s_and_b32 s36, s14, 3
v_readfirstlane_b32 s15, v1
s_lshr_b32 s37, s14, 2
s_mul_i32 s38, s3, 7
s_add_u32 s37, s37, s38
""")
    A("""
v_lshrrev_b32 v5, 3, v2
v_and_b32 v6, 7, v2
v_lshrrev_b32 v7, 1, v5
v_and_b32 v7, 1, v7
v_lshlrev_b32 v7, 1, v7
v_xor_b32 v6, v6, v7
s_movk_i32 s38, 7168
v_mul_lo_u32 v5, v5, s38
s_lshl_b32 s38, s37, 7
s_mul_i32 s39, s15, 16*7168
s_add_u32 s38, s38, s39
v_add_u32 v5, s38, v5
v_lshl_add_u32 v3, v6, 4, v5
v_xor_b32 v6, 4, v6
v_lshl_add_u32 v4, v6, 4, v5
""")
    A("""
s_lshl_b32 s38, s36, 16
s_lshl_b32 s39, s15, 14
s_add_u32 s38, s38, s39
v_lshl_add_u32 v5, v2, 4, s38
""")
    A("""
v_lshrrev_b32 v8, 4, v2
v_and_b32 v9, 1, v8
v_lshrrev_b32 v8, 1, v8
v_bfe_u32 v10, v2, 2, 2
v_lshl_add_u32 v11, v8, 3, v10
v_lshlrev_b32 v11, 7, v11
v_lshl_add_u32 v11, v9, 13, v11
v_lshrrev_b32 v10, 1, v10
v_lshl_or_b32 v10, v9, 1, v10
v_xor_b32 v10, s15, v10
v_lshl_add_u32 v11, v10, 5, v11
v_and_b32 v10, 3, v2
v_lshl_add_u32 v6, v10, 3, v11
v_add_u32 v7, 0x10000, v6
""")
    A(f"""
v_and_b32 v12, 31, v2
s_movk_i32 s38, {XROW}
v_mul_lo_u32 v12, v12, s38
v_lshrrev_b32 v13, 5, v2
v_lshl_add_u32 v12, v13, 4, v12
v_add_u32 v12, {XB}, v12
""")
    for j in range(4):
        if rot:
            A(f"s_add_u32 s38, s36, {j}\ns_and_b32 s38, s38, 3\ns_lshl_b32 s{44+j}, s38, 6")
        else:
            A(f"s_mov_b32 s{44+j}, {j*64}")
        A(f"s_lshl_b32 s38, s{44+j}, 1\nv_add_u32 v{8+j}, s38, v12")
        A(f"s_mul_i32 s{44+j}, s{44+j}, 7168")
    A("s_waitcnt lgkmcnt(0)")
    A.srd(16, 4, X_BYTES); A.srd(20, 6, W_BYTES); A.srd(24, 8, W_BYTES); A.srd(32, 12, WS_BYTES)
    A("s_lshl_b32 s40, s15, 11")
    A(f"s_mul_i32 s41, s15, {8*XROW}\ns_add_u32 s41, s41, {XB}")
    for i in range(16):
        A(f"v_accvgpr_write_b32 a{i}, 0")
    def issue_w(c):
        slot = c % NSLOT
        for mat in range(2):
            for i in range(2):
                A(f"s_add_u32 s42, s{44+(c&3)}, {((c & ~3)*64 + 8*i)*7168}")
                A(f"s_add_u32 m0, s40, {slot*16384 + mat*8192 + i*1024}")
                A("s_nop 0")
                A(f"buffer_load_dwordx4 v{3+mat}, s[{20+4*mat}:{23+4*mat}], s42 offen {wflags} lds")
    def issue_x(half):
        for r in range(8):
            A(f"s_mov_b32 s42, {r*2048 + half*1024}")
            A(f"s_add_u32 m0, s41, {r*XROW + half*1024}")
            A("s_nop 0")
            A("buffer_load_dwordx4 v5, s[16:19], s42 offen lds")
    log = []
    def W(c): issue_w(c); log.extend([('w', c)]*4)
    def X(h): issue_x(h); log.extend([('x', h)]*8)
    W(0); X(0); W(1); W(2); W(3); X(1)
    W(4)
    def frag(c, ks):
        return 16 + (c & 1)*32 + ks*8
    def reads(c):
        slot = c % NSLOT
        vb = 7 if slot == 4 else 6
        so = 0 if slot == 4 else slot*16384
        for ks in range(4):
            f = frag(c, ks)
            A(f"ds_read_b64_tr_b16 v[{f}:{f+1}], v{vb} offset:{so + ks*2048}")
            A(f"ds_read_b64_tr_b16 v[{f+2}:{f+3}], v{vb} offset:{so + ks*2048 + 512}")
            A(f"ds_read_b128 v[{f+4}:{f+7}], v{8+(c&3)} offset:{(c & ~3)*128 + ks*32}")
    def mfmas(c):
        for ks in range(4):
            f = frag(c, ks)
            A(f"v_mfma_f32_32x32x16_bf16 a[0:15], v[{f}:{f+3}], v[{f+4}:{f+7}], a[0:15]")
    for c in range(16):
        need = max(i for i, e in enumerate(log) if e == ('w', c) or e == ('x', c//8))
        n = len(log) - 1 - need
        A(f"s_waitcnt vmcnt({n}) lgkmcnt(0)")
        A("s_barrier")
        reads(c)
        if c >= 1 and c + 4 < 16:
            W(c + 4)
        if c >= 1:
            mfmas(c - 1)
    A("s_waitcnt lgkmcnt(0)")
    mfmas(15)
    A(f"s_mov_b32 s50, {f32hex(GELU_C0)}\ns_mov_b32 s51, {f32hex(GELU_C1)}\ns_mov_b32 s52, 0xffff0000")
    A("s_nop 7\ns_nop 7")
    for j in range(16):
        A(f"v_accvgpr_read_b32 v{16+j}, a{j}")
    A(f"v_mov_b32 v60, s50")
    for p in range(8):
        A(f"v_cvt_pk_bf16_f32 v{32+p}, v{16+2*p}, v{17+2*p}")
    for p in range(8):
        A(f"v_lshlrev_b32 v{16+2*p}, 16, v{32+p}")
        A(f"v_and_b32 v{17+2*p}, s52, v{32+p}")
    for j in range(8):
        A(f"v_mul_f32 v{32+j}, v{16+j}, v{16+j}")
    for j in range(8):
        A(f"v_fma_f32 v{32+j}, v{32+j}, s51, v60")
    for j in range(8):
        A(f"v_mul_f32 v{32+j}, v{32+j}, v{16+j}")
    for j in range(8):
        A(f"v_exp_f32 v{32+j}, v{32+j}")
    for j in range(8):
        A(f"v_add_f32 v{32+j}, 1.0, v{32+j}")
    for j in range(8):
        A(f"v_rcp_f32 v{32+j}, v{32+j}")
    for j in range(8):
        A(f"v_mul_f32 v{32+j}, v{32+j}, v{16+j}")
    for p in range(4):
        A(f"v_cvt_pk_bf16_f32 v{40+p}, v{32+2*p}, v{33+2*p}")
    for p in range(4):
        A(f"v_lshlrev_b32 v{32+2*p}, 16, v{40+p}")
        A(f"v_and_b32 v{33+2*p}, s52, v{40+p}")
    for j in range(8):
        A(f"v_mul_f32 v{32+j}, v{32+j}, v{24+j}")
    for p in range(4):
        A(f"v_cvt_pk_bf16_f32 v{40+p}, v{32+2*p}, v{33+2*p}")
    A(f"""
s_mul_i32 s38, s36, 224
s_lshl_b32 s39, s37, 2
s_add_u32 s38, s38, s39
s_add_u32 s38, s38, s15
s_lshl_b32 s38, s38, 10
v_lshlrev_b32 v12, 4, v2
buffer_store_dwordx4 v[40:43], v12, s[32:35], s38 offen
L1_end:
s_endpgm
""")
    return name, 96, 80, XB + 32*XROW

def k2(A, wflags=""):
    name = "p2_kernel"
    RED = 4*28672
    A.kernel_start(name)
    A("""
s_cmp_ge_u32 s2, 256
s_cbranch_scc1 L2_end
s_load_dwordx2 s[10:11], s[0:1], 24
s_load_dwordx2 s[12:13], s[0:1], 48
s_and_b32 s3, s2, 7
s_lshr_b32 s14, s2, 3
v_lshrrev_b32 v1, 6, v0
v_and_b32 v2, 63, v0
s_and_b32 s36, s14, 3
v_readfirstlane_b32 s15, v1
s_lshr_b32 s37, s14, 2
s_and_b32 s38, s3, 1
s_lshl_b32 s38, s38, 3
s_add_u32 s37, s37, s38
s_lshr_b32 s35, s3, 1
s_mov_b32 s53, s35
""")
    A("""
v_lshrrev_b32 v5, 3, v2
v_and_b32 v6, 7, v2
v_lshrrev_b32 v7, 1, v5
v_and_b32 v7, 1, v7
v_lshlrev_b32 v7, 2, v7
v_xor_b32 v6, v6, v7
v_lshlrev_b32 v5, 11, v5
v_lshl_add_u32 v5, v6, 4, v5
s_mul_i32 s38, s53, 896
s_mul_i32 s39, s15, 224
s_add_u32 s38, s38, s39
s_lshl_b32 s38, s38, 11
s_lshl_b32 s39, s37, 7
s_add_u32 s38, s38, s39
v_add_u32 v3, s38, v5
v_lshlrev_b32 v4, 4, v2
s_mul_i32 s40, s15, 28672
""")
    A("""
v_lshrrev_b32 v8, 5, v2
v_bfe_u32 v10, v2, 2, 2
v_lshl_add_u32 v11, v8, 2, v10
v_lshlrev_b32 v11, 7, v11
v_lshrrev_b32 v10, 1, v10
v_lshl_add_u32 v11, v10, 6, v11
v_bfe_u32 v10, v2, 4, 1
v_lshl_add_u32 v11, v10, 5, v11
v_and_b32 v10, 3, v2
v_lshl_add_u32 v11, v10, 3, v11
v_xor_b32 v7, 64, v11
v_add_u32 v6, s40, v11
v_add_u32 v7, s40, v7
s_waitcnt lgkmcnt(0)
""")
    A.srd(28, 10, W_BYTES); A.srd(32, 12, WS_BYTES)
    A("""
s_mul_i32 s41, s36, 224
s_mul_i32 s38, s53, 56
s_add_u32 s41, s41, s38
s_mul_i32 s38, s15, 14
s_add_u32 s41, s41, s38
s_lshl_b32 s41, s41, 10
""")
    for i in range(32):
        A(f"v_accvgpr_write_b32 a{i}, 0")
    HB = 16
    for j in range(14):
        for i in range(2):
            A(f"s_mov_b32 s42, {(2*j+i)*8*2048}")
            A(f"s_add_u32 m0, s40, {(2*j+i)*1024}")
            A("s_nop 0")
            A(f"buffer_load_dwordx4 v3, s[28:31], s42 offen {wflags} lds")
        A(f"s_add_u32 s42, s41, {j*1024}")
        A(f"buffer_load_dwordx4 v[{HB+4*j}:{HB+4*j+3}], v4, s[32:35], s42 offen")
    FB = 72
    for j in range(14):
        A(f"s_waitcnt vmcnt({3*(13-j)})")
        f = FB + (j & 1)*8
        for t in range(2):
            for q in range(2):
                A(f"ds_read_b64_tr_b16 v[{f+4*t+2*q}:{f+4*t+2*q+1}], v{6+t} offset:{(16*j+8*q)*128}")
        A("s_waitcnt lgkmcnt(2)")
        A(f"v_mfma_f32_32x32x16_bf16 a[0:15], v[{f}:{f+3}], v[{HB+4*j}:{HB+4*j+3}], a[0:15]")
        A("s_waitcnt lgkmcnt(0)")
        A(f"v_mfma_f32_32x32x16_bf16 a[16:31], v[{f+4}:{f+7}], v[{HB+4*j}:{HB+4*j+3}], a[16:31]")
    A("s_nop 7\ns_nop 7")
    for i in range(32):
        A(f"v_accvgpr_read_b32 v{16+i}, a{i}")
    A(f"s_lshl_b32 s38, s15, 11\ns_add_u32 s38, s38, {RED}\nv_add_u32 v8, s38, v4")
    for d in range(4):
        for hh in range(2):
            r = 16 + 8*d + 4*hh
            A(f"ds_write_b128 v8, v[{r}:{r+3}] offset:{d*8192 + hh*1024}")
    A(f"s_lshl_b32 s38, s15, 13\ns_add_u32 s38, s38, {RED}\nv_add_u32 v9, s38, v4")
    A("s_waitcnt lgkmcnt(0)\ns_barrier")
    for s in range(4):
        for hh in range(2):
            r = 16 + 8*s + 4*hh
            A(f"ds_read_b128 v[{r}:{r+3}], v9 offset:{s*2048 + hh*1024}")
    A("s_waitcnt lgkmcnt(0)")
    for j in range(8):
        A(f"v_add_f32 v{16+j}, v{16+j}, v{24+j}")
        A(f"v_add_f32 v{32+j}, v{32+j}, v{40+j}")
    for j in range(8):
        A(f"v_add_f32 v{16+j}, v{16+j}, v{32+j}")
    A(f"""
s_lshl_b32 s38, s53, 6
s_lshl_b32 s39, s36, 4
s_add_u32 s38, s38, s39
s_add_u32 s38, s38, s37
s_lshl_b32 s38, s38, 2
s_add_u32 s38, s38, s15
s_lshl_b32 s38, s38, 11
s_add_u32 s38, s38, {P_OFF}
buffer_store_dwordx4 v[16:19], v4, s[32:35], s38 offen
buffer_store_dwordx4 v[20:23], v4, s[32:35], s38 offen offset:1024
L2_end:
s_endpgm
""")
    return name, 128, 96, RED + 32768

def k3(A):
    name = "p3_kernel"
    A.kernel_start(name)
    A(f"""
s_cmp_ge_u32 s2, 256
s_cbranch_scc1 L3_end
s_load_dwordx2 s[10:11], s[0:1], 32
s_load_dwordx2 s[12:13], s[0:1], 48
v_lshlrev_b32 v4, 4, v0
s_lshl_b32 s38, s2, 11
s_add_u32 s38, s38, {P_OFF}
s_waitcnt lgkmcnt(0)
""")
    A.srd(28, 10, OUT_BYTES); A.srd(32, 12, WS_BYTES)
    for ks in range(4):
        A(f"s_add_u32 s39, s38, {ks*64*4*2048}")
        A(f"buffer_load_dwordx4 v[{16+8*ks}:{19+8*ks}], v4, s[32:35], s39 offen")
        A(f"buffer_load_dwordx4 v[{20+8*ks}:{23+8*ks}], v4, s[32:35], s39 offen offset:1024")
    A("""
s_lshr_b32 s40, s2, 6
s_lshl_b32 s40, s40, 16
s_and_b32 s41, s2, 63
s_lshl_b32 s41, s41, 5
s_add_u32 s40, s40, s41
v_and_b32 v5, 31, v0
v_lshlrev_b32 v5, 11, v5
v_lshrrev_b32 v6, 5, v0
v_lshl_add_u32 v5, v6, 4, v5
s_waitcnt vmcnt(0)
""")
    for j in range(8):
        A(f"v_add_f32 v{16+j}, v{16+j}, v{24+j}")
        A(f"v_add_f32 v{32+j}, v{32+j}, v{40+j}")
    for j in range(8):
        A(f"v_add_f32 v{16+j}, v{16+j}, v{32+j}")
    for p in range(4):
        A(f"v_cvt_pk_bf16_f32 v{8+p}, v{16+2*p}, v{17+2*p}")
    A("""
s_nop 1
v_permlane32_swap_b32 v8, v10
v_permlane32_swap_b32 v9, v11
buffer_store_dwordx4 v[8:11], v5, s[28:31], s40 offen
L3_end:
s_endpgm
""")
    return name, 48, 48, 0

def main(out, wflags1="", wflags2="", rot=True):
    A = Asm()
    body = Asm()
    n1, v1, a1, l1 = k1(body, wflags1, rot)
    n2, v2, a2, l2 = k2(body, wflags2)
    n3, v3, a3, l3 = k3(body)
    A.raw(HEADER_COMMENT.rstrip())
    A.raw(f"; @launch kernel={n1} grid=(224,1,1) block=(256,1,1) lds={l1}")
    A.raw(f"; @launch kernel={n2} grid=(256,1,1) block=(256,1,1) lds={l2}")
    A.raw(f"; @launch kernel={n3} grid=(256,1,1) block=(64,1,1) lds={l3}")
    A.raw('.amdgcn_target "amdgcn-amd-amdhsa--gfx950"')
    A.raw(".text")
    A.L += body.L
    A.raw('.section .rodata,"a"')
    A.descriptor(n1, v1, a1); A.descriptor(n2, v2, a2); A.descriptor(n3, v3, a3)
    open(out, "w").write(A.text())

if __name__ == "__main__":
    main("v1.s")
    main("v1_nt.s", "nt", "nt")
    main("v1_norot.s", rot=False)
```

```python
import re,sys
KN="standalone__glu_gated_geglu__sampling_kernel"
def mk(src, dst, k, fac, nent=1024, mode='span'):
    s=open(src).read()
    m=re.search(r"; @launch grid=\((\d+),1,1\) block=\((\d+),1,1\) lds=(\d+)\n", s)
    g,b,l=map(int,m.groups())
    s=s.replace(m.group(0), f"; @launch kernel=main_kernel grid=({g},1,1) block=({b},1,1) lds={l}\n; @launch kernel=p4_kernel grid=(1,1,1) block=(1024,1,1) lds=64\n")
    s=s.replace(KN,"main_kernel")
    if mode=='span':
        red="ds_min_u32 v2, v4\n  ds_max_u32 v2, v5 offset:4"; fin="s_sub_u32 s22, s21, s20"
    else:
        red="ds_add_u32 v2, v5 offset:4"; fin=f"s_sub_u32 s22, s21, {nent}"
    k4=f""".globl p4_kernel
.p2align 8
.type p4_kernel,@function
p4_kernel:
  s_memrealtime s[90:91]
  s_load_dwordx2 s[12:13], s[0:1], 48
  s_cmp_ge_u32 s2, 1
  s_cbranch_scc1 L4_end
  s_waitcnt lgkmcnt(0)
  s_mov_b32 s32, s12
  s_and_b32 s33, s13, 0xffff
  s_mov_b32 s34, 268435456
  s_mov_b32 s35, 0x20000
  v_lshlrev_b32 v6, 6, v0
  v_add_u32 v6, 0x8000000, v6
  v_min_u32 v1, {nent-1}, v0
  v_lshlrev_b32 v1, 6, v1
  v_add_u32 v1, 0x8000000, v1
  buffer_load_dword v4, v6, s[32:35], 0 offen
  buffer_load_dword v5, v1, s[32:35], 0 offen offset:{4*k}
  v_mov_b32 v2, 0
  v_mov_b32 v8, -1
  v_mov_b32 v9, 0
  ds_write_b64 v2, v[8:9]
  s_waitcnt vmcnt(0) lgkmcnt(0)
  s_barrier
  {red}
  s_waitcnt lgkmcnt(0)
  s_barrier
  ds_read_b64 v[8:9], v2
  s_waitcnt lgkmcnt(0)
  v_readfirstlane_b32 s20, v8
  v_readfirstlane_b32 s21, v9
  s_nop 3
  {fin}
  s_min_u32 s22, s22, 5000
  s_mul_i32 s22, s22, {fac}
  s_add_u32 s22, s22, 300
L4_sp:
  s_memrealtime s[8:9]
  s_waitcnt lgkmcnt(0)
  s_sub_u32 s10, s8, s90
  s_cmp_lt_u32 s10, s22
  s_cbranch_scc1 L4_sp
L4_end:
  s_endpgm
"""
    s=s.replace('.section .rodata,"a"\n', k4+'.section .rodata,"a"\n')
    s+=""".p2align 6
.amdhsa_kernel p4_kernel
  .amdhsa_next_free_vgpr 32
  .amdhsa_next_free_sgpr 102
  .amdhsa_accum_offset 32
  .amdhsa_group_segment_fixed_size 0
  .amdhsa_kernarg_size 56
  .amdhsa_user_sgpr_count 2
  .amdhsa_user_sgpr_kernarg_segment_ptr 1
  .amdhsa_system_sgpr_workgroup_id_x 1
.end_amdhsa_kernel
"""
    open(dst,"w").write(s)
if __name__=="__main__":
    E="exp/"; src=E+sys.argv[1]
    mk(src,E+"cf_0.s",9,0)
    mk(src,E+"cf_done.s",9,10)
    mk(src,E+"cf_hst.s",3,10,nent=448)
    mk(src,E+"cf_start.s",0,10)
    mk(src,E+"cf_swok.s",6,10)
    mk(src,E+"cf_retry.s",15,10,mode='cnt')
```

```python
import re,sys
KN="standalone__glu_gated_geglu__sampling_kernel"
def mk(src, dst, k, fac, nent=1024, mode='span'):
    s=open(src).read()
    m=re.search(r"; @launch grid=\((\d+),1,1\) block=\((\d+),1,1\) lds=(\d+)\n", s)
    g,b,l=map(int,m.groups())
    s=s.replace(m.group(0), f"; @launch kernel=main_kernel grid=({g},1,1) block=({b},1,1) lds={l}\n; @launch kernel=p4_kernel grid=(1,1,1) block=(1024,1,1) lds=64\n")
    s=s.replace(KN,"main_kernel")
    if mode=='span':
        red="ds_min_u32 v2, v4\n  ds_max_u32 v2, v5 offset:4"; fin="s_sub_u32 s22, s21, s20"
    elif mode=='mean':
        red=f"ds_min_u32 v2, v4\n  s_waitcnt lgkmcnt(0)\n  s_barrier\n  ds_read_b32 v10, v2\n  s_waitcnt lgkmcnt(0)\n  v_sub_u32 v5, v5, v10\n  ds_add_u32 v2, v5 offset:4"; fin="s_lshr_b32 s22, s21, 10"
    elif mode=='val':
        red="ds_add_u32 v2, v5 offset:4"; fin="s_lshr_b32 s22, s21, 10"
    else:
        red="ds_add_u32 v2, v5 offset:4"; fin=f"s_sub_u32 s22, s21, {nent}"
    k4=f""".globl p4_kernel
.p2align 8
.type p4_kernel,@function
p4_kernel:
  s_memrealtime s[90:91]
  s_load_dwordx2 s[12:13], s[0:1], 48
  s_cmp_ge_u32 s2, 1
  s_cbranch_scc1 L4_end
  s_waitcnt lgkmcnt(0)
  s_mov_b32 s32, s12
  s_and_b32 s33, s13, 0xffff
  s_mov_b32 s34, 268435456
  s_mov_b32 s35, 0x20000
  v_lshlrev_b32 v6, 6, v0
  v_add_u32 v6, 0x8000000, v6
  v_min_u32 v1, {nent-1}, v0
  v_lshlrev_b32 v1, 6, v1
  v_add_u32 v1, 0x8000000, v1
  buffer_load_dword v4, v6, s[32:35], 0 offen
  buffer_load_dword v5, v1, s[32:35], 0 offen offset:{4*k}
  v_mov_b32 v2, 0
  v_mov_b32 v8, -1
  v_mov_b32 v9, 0
  ds_write_b64 v2, v[8:9]
  s_waitcnt vmcnt(0) lgkmcnt(0)
  s_barrier
  {red}
  s_waitcnt lgkmcnt(0)
  s_barrier
  ds_read_b64 v[8:9], v2
  s_waitcnt lgkmcnt(0)
  v_readfirstlane_b32 s20, v8
  v_readfirstlane_b32 s21, v9
  s_nop 3
  {fin}
  s_min_u32 s22, s22, 5000
  s_mul_i32 s22, s22, {fac}
  s_add_u32 s22, s22, 300
L4_sp:
  s_memrealtime s[8:9]
  s_waitcnt lgkmcnt(0)
  s_sub_u32 s10, s8, s90
  s_cmp_lt_u32 s10, s22
  s_cbranch_scc1 L4_sp
L4_end:
  s_endpgm
"""
    s=s.replace('.section .rodata,"a"\n', k4+'.section .rodata,"a"\n')
    s+=""".p2align 6
.amdhsa_kernel p4_kernel
  .amdhsa_next_free_vgpr 32
  .amdhsa_next_free_sgpr 102
  .amdhsa_accum_offset 32
  .amdhsa_group_segment_fixed_size 0
  .amdhsa_kernarg_size 56
  .amdhsa_user_sgpr_count 2
  .amdhsa_user_sgpr_kernarg_segment_ptr 1
  .amdhsa_system_sgpr_workgroup_id_x 1
.end_amdhsa_kernel
"""
    open(dst,"w").write(s)
if __name__=="__main__":
    E="exp/"; src=E+sys.argv[1]
    mk(src,E+"cf_0.s",9,0)
    mk(src,E+"cf_done.s",9,10)
    mk(src,E+"cf_hst.s",3,10,nent=448)
    mk(src,E+"cf_start.s",0,10)
    mk(src,E+"cf_swok.s",6,10)
    mk(src,E+"cf_retry.s",15,10,mode='cnt')
```

```python
import sys
from common import *

HINT    = 896*1024
IN_OFF  = 1 << 20
CLR_A   = 960*1024 // 16
DONE    = 0xF0000
ST_OFF  = 0x8000000
SLOT    = 24576
SPIN    = 1 << 16
NP1     = 14

def gen(out, D=3, NS=4, stamps=False, allb=False, outflags="", hsleep=1, st_a=4, st_b=12,
        hpos=0, ppos=0, pj=None, LA=6, wdp=(20, 20, 16), nfill=8, codepf=False, ftouch=True, bs=False, clk=False, nost=(), touch=0, ptouch=None, ltouch=False, agst=False, nohs=False, lead=None):
    ARGS = {k: v for k, v in locals().items() if k != "out"}
    WD = NS*SLOT
    OWN = 16384
    LDS_SZ = WD + 448*128
    A = Asm()
    A.raw(HEADER_COMMENT.rstrip())
    A.raw(f"; @launch grid=(256,1,1) block=(576,1,1) lds={LDS_SZ}")
    A.raw('.amdgcn_target "amdgcn-amd-amdhsa--gfx950"')
    A.raw(".text")
    A.kernel_start(KN)
    def stamp(k):
        if stamps and (k == 0 or not allb) and k not in nost: A(f"s_memrealtime s[{64+2*k}:{65+2*k}]")
    def agent_setup():
        A(f"""
v_lshlrev_b32 v6, 2, v5
v_xor_b32 v6, v4, v6
v_lshlrev_b32 v7, 11, v3
s_lshr_b32 s51, s14, 1
s_lshl_b32 s51, s51, 7
v_add_u32 v7, s51, v7
v_lshl_add_u32 v20, v6, 4, v7
v_add_u32 v21, {16384-1024}, v20
v_add_u32 v22, {2*(16384-1024)}, v20
v_add_u32 v23, {3*(16384-1024)}, v20
s_mul_i32 s58, s3, {448*2048}
v_and_b32 v24, 15, v2
v_lshlrev_b32 v24, 7, v24
v_add_u32 v24, {DONE}, v24
v_mov_b32 v25, 0
s_lshl_b32 s50, s2, 7
s_add_u32 s50, s50, {HINT}
s_add_u32 s36, s12, s50
s_addc_u32 s37, s13, 0
""")
        A.srd(28, 10, W_BYTES); A.srd(32, 12, WS_BYTES)
    def wd_group():
        for q in range(4):
            A(f"buffer_load_dwordx4 v{20+q}, s[28:31], s60 offen offset:{q*1024} lds")
        A("s_add_u32 m0, m0, 4096\ns_add_u32 s60, s60, 65536")
    def hintwait(tag, off, n):
        A(f"""
s_mov_b32 s59, 0
L_h{tag}:
s_load_dwordx8 s[88:95], s[36:37], {off} glc
s_add_u32 s59, s59, 1
s_cmp_ge_u32 s59, {SPIN}
s_waitcnt lgkmcnt(0)
s_cbranch_scc1 L_hok{tag}
""")
        for k in range(1, n): A(f"s_max_u32 s88, s88, s{88+k}")
        A(f"s_cmp_eq_u32 s88, -1\ns_cbranch_scc1 L_h{tag}\nL_hok{tag}:")
    def flagload(vf, va, vz):
        A(f"buffer_load_dword v{vf+1}, v{vz}, s[40:43], 0 offen sc1\nbuffer_load_dword v{vf}, v{va}, s[32:35], 0 offen sc1")
    def flagtest(vf):
        A(f"v_cmp_ne_u32 vcc, v{vf}, v{vf+1}\nv_cmp_eq_u32 s[26:27], 0, v{vf+1}\ns_or_b64 vcc, vcc, s[26:27]")
    def flagfast(vf):
        flagtest(vf)
        A("s_cbranch_vccnz L_fslow\nL_ffast:")
    def flagspin(tag, vf, va, vz):
        A(f"s_mov_b32 s59, 0\nL_f{tag}:")
        flagtest(vf)
        A(f"""
s_cbranch_vccz L_fok{tag}
s_add_u32 s59, s59, 1
s_cmp_ge_u32 s59, {SPIN}
s_cbranch_scc1 L_fok{tag}
s_sleep 8
""")
        flagload(vf, va, vz)
        A(f"s_waitcnt vmcnt(0)\ns_branch L_f{tag}\nL_fok{tag}:")
    stamp(0)
    A(f"""
s_load_dwordx8 s[4:11], s[0:1], 0
s_load_dwordx4 s[44:47], s[0:1], 32
s_load_dwordx2 s[12:13], s[0:1], 48
s_cmp_ge_u32 s2, 256
s_cbranch_scc1 L_end
v_lshrrev_b32 v1, 6, v0
v_and_b32 v2, 63, v0
s_and_b32 s3, s2, 7
v_readfirstlane_b32 s15, v1
s_lshr_b32 s14, s2, 3
v_lshrrev_b32 v3, 3, v2
v_and_b32 v4, 7, v2
v_bfe_u32 v5, v2, 4, 1
s_cmp_lg_u32 s15, 8
s_cbranch_scc1 L_compute
s_cmp_ge_u32 s14, {NP1}
s_cbranch_scc1 L_help_ld
""")
    A(f"""
s_lshr_b32 s49, s14, 1
s_mul_i32 s50, s3, 7
s_add_u32 s50, s49, s50
v_lshlrev_b32 v6, 1, v5
v_xor_b32 v6, v4, v6
v_mul_u32_u24 v7, 7168, v3
s_lshl_b32 s50, s50, 7
v_add_u32 v7, s50, v7
v_lshl_add_u32 v8, v6, 4, v7
v_add_u32 v9, {8*7168-1024}, v8
v_xor_b32 v6, 4, v6
v_lshl_add_u32 v10, v6, 4, v7
v_add_u32 v11, {8*7168-1024}, v10
v_lshrrev_b32 v6, 1, v3
v_xor_b32 v6, v4, v6
s_and_b32 s50, s14, 1
s_lshl_b32 s50, s50, 6
v_add_u32 v7, s50, v3
v_lshlrev_b32 v7, 11, v7
v_lshl_add_u32 v12, v6, 4, v7
v_xor_b32 v13, 64, v12
v_add_u32 v14, {2*(16384-1024)}, v12
v_add_u32 v15, {3*(16384-1024)}, v13
v_add_u32 v13, {16384-1024}, v13
s_mov_b32 s52, 0
s_mov_b32 s56, 0
s_mov_b32 s57, 0
s_waitcnt lgkmcnt(0)
""")
    A.srd(20, 6, W_BYTES)
    A(f"s_sub_u32 s24, s8, 2048\ns_subb_u32 s25, s9, 0\ns_and_b32 s25, s25, 0xffff\ns_mov_b32 s26, {W_BYTES+2048}\ns_mov_b32 s27, 0x20000")
    A.srd(16, 4, X_BYTES)
    if ltouch:
        A(f"v_mul_u32_u24 v16, {W_BYTES//8}, v4\nv_add_u32 v16, 0x8000, v16\nbuffer_load_dword v17, v16, s[20:23], 0 offen\nbuffer_load_dword v17, v16, s[24:27], 0 offen")
    A("L_item:\ns_mov_b32 m0, s52\ns_add_u32 s53, s56, 65536")
    for l in range(4):
        A(f"""
buffer_load_dwordx4 v8, s[20:23], s57 offen lds
buffer_load_dwordx4 v9, s[20:23], s57 offen offset:1024 lds
buffer_load_dwordx4 v10, s[24:27], s57 offen offset:2048 lds
buffer_load_dwordx4 v11, s[24:27], s57 offen offset:3072 lds
s_add_u32 m0, m0, 4096
s_add_u32 s57, s57, {16*7168}
""")
    for g, sr in enumerate((56, 53)):
        A(f"""
buffer_load_dwordx4 v12, s[16:19], s{sr} offen lds
buffer_load_dwordx4 v13, s[16:19], s{sr} offen offset:1024 lds
buffer_load_dwordx4 v14, s[16:19], s{sr} offen offset:2048 lds
buffer_load_dwordx4 v15, s[16:19], s{sr} offen offset:3072 lds
""")
        if g == 0: A(f"s_add_u32 m0, m0, 4096\ns_add_u32 s52, s52, {SLOT}")
    A(f"""
s_cmp_eq_u32 s52, {NS*SLOT}
s_cmov_b32 s52, 0
s_add_u32 s56, s56, 128
s_cmp_lt_u32 s56, {128*D}
s_cbranch_scc1 L_item
s_cmp_lt_u32 s56, {128*16}
s_waitcnt vmcnt({24*(D-1)})
s_barrier
s_cbranch_scc1 L_item
""")
    assert D == 3 and sum(wdp) == 56 and all(n % 4 == 0 for n in wdp)
    agent_setup()
    A(f"s_mov_b32 m0, {WD}\ns_mov_b32 s60, s58")
    def piece(n):
        for g in range(n//4): wd_group()
    def ag(k):
        if agst: A(f"s_memrealtime s[{70+2*k}:{71+2*k}]")
    ag(0)
    piece(wdp[0])
    ag(1)
    A(f"s_waitcnt vmcnt({24 + wdp[0]})\ns_barrier")
    piece(wdp[1])
    ag(2)
    A(f"s_waitcnt vmcnt({wdp[0] + wdp[1]})\ns_barrier")
    piece(wdp[2])
    ag(3)
    if agst:
        A("s_waitcnt vmcnt(16)"); ag(4); A("s_waitcnt vmcnt(8)"); ag(5); A("s_waitcnt vmcnt(0)"); ag(6)
        A("s_waitcnt lgkmcnt(0)\n" + "".join(f"v_mov_b32 v{40+k}, s{70+2*k}\n" for k in range(7))
          + f"v_mov_b32 v29, 0\ns_lshl_b32 s50, s2, 5\ns_add_u32 s50, s50, {ST_OFF+131072}\ns_barrier\ns_mov_b64 exec, 1\nbuffer_store_dwordx4 v[40:43], v29, s[32:35], s50 offen\nbuffer_store_dwordx4 v[44:47], v29, s[32:35], s50 offen offset:16\ns_mov_b64 exec, -1\ns_branch L_agent2")
    A("s_waitcnt vmcnt(0)\nL_agent:\ns_barrier\nL_agent2:")
    hintwait("a", 0, 7)
    A("s_barrier\ns_barrier")
    if bs: A("s_barrier")
    hintwait("b", 64, 8)
    A("s_barrier\nL_end:\ns_endpgm")
    A(f"""
L_help_ld:
s_cmp_ge_u32 s14, 30
s_cbranch_scc1 L_fill
s_sub_u32 s48, s14, {NP1}
s_cmp_ge_u32 s48, 14
s_cbranch_scc1 L_pfx
s_cmp_ge_u32 s48, 7
s_cselect_b32 s49, 7, 0
s_sub_u32 s49, s48, s49
s_lshl_b32 s49, s49, 6
v_add_u32 v6, s49, v2
v_mul_u32_u24 v7, 9363, v6
v_lshrrev_b32 v7, 16, v7
v_mul_u32_u24 v8, 7, v7
v_sub_u32 v8, v6, v8
v_mul_u32_u24 v7, 7168, v7
v_lshl_add_u32 v6, v8, 7, v7
s_mul_i32 s49, s3, 896
v_add_u32 v6, s49, v6
s_mov_b32 s50, {64*7168}
s_cmp_ge_u32 s48, 7
s_waitcnt lgkmcnt(0)
s_cselect_b32 s20, s8, s6
s_cselect_b32 s21, s9, s7
s_mov_b32 s22, {W_BYTES}
s_branch L_pfgo
L_pfx:
s_sub_u32 s49, s48, 14
s_lshl_b32 s49, s49, 6
v_add_u32 v6, s49, v2
v_lshlrev_b32 v6, 11, v6
s_mov_b32 s50, 128
s_waitcnt lgkmcnt(0)
s_mov_b32 s20, s4
s_mov_b32 s21, s5
s_mov_b32 s22, {X_BYTES}
L_pfgo:
s_and_b32 s21, s21, 0xffff
s_mov_b32 s23, 0x20000
s_mov_b32 s51, 0
""")
    if ptouch is not None:
        A(f"v_mul_u32_u24 v9, {W_BYTES//8}, v4\ns_lshl_b32 s49, s2, 7\nv_add_u32 v9, s49, v9")
    for c in range(16):
        if c == ptouch: A("buffer_load_dword v16, v9, s[20:23], 0 offen")
        A(f"buffer_load_dword v16, v6, s[20:23], s51 offen" + ("\ns_add_u32 s51, s51, s50" if c < 15 else ""))
    agent_setup(); A.srd(40, 46, 256)
    if ftouch: flagload(26, 24, 25)
    nrest = 3136 - 2*64*nfill
    per = -(-nrest // 16)
    A(f"""
s_mul_i32 s52, s48, {per}
s_add_u32 s52, s52, {2*64*nfill}
s_add_u32 s50, s52, {per}
L_pfw:
s_min_u32 s50, s50, 3136
s_sub_u32 s53, s50, 1
L_pfw1:
v_add_u32 v6, s52, v2
v_min_u32 v6, s53, v6
v_mul_u32_u24 v7, 9363, v6
v_lshrrev_b32 v7, 16, v7
v_mul_u32_u24 v8, 7, v7
v_sub_u32 v8, v6, v8
v_lshlrev_b32 v7, 11, v7
v_lshl_add_u32 v6, v8, 7, v7
s_add_u32 s52, s52, 64
s_cmp_lt_u32 s52, s50
buffer_load_dword v30, v6, s[28:31], s58 offen
s_cbranch_scc1 L_pfw1
s_and_b32 s52, s14, 1
s_mov_b32 s53, 0
L_wdh:
""")
    A(f"""
s_mul_i32 s61, s52, 28672
s_add_u32 m0, s61, {WD}
s_lshl_b32 s61, s61, 4
s_add_u32 s60, s61, s58
s_add_u32 s61, s60, {224*2048}
L_wdg:
""")
    wd_group()
    A(f"""
s_cmp_lt_u32 s60, s61
s_cbranch_scc1 L_wdg
s_xor_b32 s52, s52, 1
s_add_u32 s53, s53, 1
s_cmp_lt_u32 s53, 2
s_cbranch_scc1 L_wdh
""")
    flagload(26, 24, 25); A("s_waitcnt vmcnt(0)")
    flagspin("b", 26, 24, 25)
    A("s_branch L_agent")
    A(f"""
L_fill:
s_memrealtime s[62:63]
v_lshlrev_b32 v12, 4, v2
v_mov_b32 v8, -1
v_mov_b32 v9, -1
v_mov_b32 v10, -1
v_mov_b32 v11, -1
s_sub_u32 s54, s2, 240
s_mul_i32 s55, s54, {CLR_A}
s_add_u32 s56, s55, {CLR_A}
s_lshl_b32 s54, s54, 7
s_add_u32 s54, s54, {DONE}
v_mov_b32 v17, 0
s_waitcnt lgkmcnt(0)
""")
    A.srd(32, 12, WS_BYTES); A.srd(40, 46, 256)
    A(f"""
s_cmp_lg_u32 s2, 240
s_cbranch_scc1 L_nopub
s_mul_i32 s62, s62, 0x9e3779b1
s_and_b32 s62, s62, 0xfefefefe
s_or_b32 s62, s62, 0x00010001
v_mov_b32 v16, s62
s_mov_b64 exec, 1
buffer_store_dword v16, v17, s[40:43], 0 offen sc1
s_mov_b64 exec, -1
L_nopub:
""")
    if codepf:
        A(f"""
s_getpc_b64 s[60:61]
L_pc:
s_add_u32 s60, s60, L_compute-L_pc
s_addc_u32 s61, s61, 0
v_lshlrev_b32 v6, 7, v2
v_mov_b32 v7, s61
v_add_co_u32 v6, vcc, s60, v6
s_nop 1
v_addc_co_u32 v7, vcc, 0, v7, vcc
v_cmp_gt_u32 vcc, (L_last-L_compute)/128, v2
s_and_saveexec_b64 s[60:61], vcc
global_load_dword v31, v[6:7], off
s_mov_b64 exec, s[60:61]
""")
    if touch:
        A(f"""
v_and_b32 v6, 7, v2
v_mul_u32_u24 v6, {W_BYTES//8}, v6
s_lshl_b32 s50, s2, 7
v_add_u32 v6, s50, v6
""")
        for (d, b) in ((20, 6), (24, 8), (28, 10)):
            A.srd(d, b, W_BYTES)
            A(f"buffer_load_dword v30, v6, s[{d}:{d+3}], 0 offen")
        A.srd(36, 44, OUT_BYTES)
        A(f"""
v_min_u32 v6, 2, v2
v_lshlrev_b32 v6, 21, v6
v_max_u32 v6, {0xF8000}, v6
buffer_load_dword v30, v6, s[32:35], 0 offen
buffer_load_dword v30, v17, s[36:39], 0 offen
buffer_load_dword v30, v17, s[40:43], 0 offen offset:128
""")
    A("L_clr0:")
    for q in range(4): A(f"buffer_store_dwordx4 v[8:11], v12, s[32:35], s55 offen offset:{q*1024} sc1")
    A(f"""
s_add_u32 s55, s55, 4096
s_cmp_lt_u32 s55, s56
s_cbranch_scc1 L_clr0
s_mov_b32 s59, 0
L_getn:
buffer_load_dword v16, v17, s[40:43], 0 offen sc1
s_add_u32 s59, s59, 1
s_cmp_ge_u32 s59, {SPIN}
s_waitcnt vmcnt(0)
v_cmp_eq_u32 vcc, 0, v16
s_cbranch_scc1 L_gotn
s_cbranch_vccnz L_getn
L_gotn:
v_mov_b32 v17, v16
v_mov_b32 v18, v16
v_mov_b32 v19, v16
s_mov_b64 exec, 0xff
buffer_store_dwordx4 v[16:19], v12, s[32:35], s54 offen sc1
s_mov_b64 exec, -1
""")
    agent_setup()
    A("v_mov_b32 v17, 0\ns_mov_b64 exec, 1")
    if stamps:
        A(f"""
s_memrealtime s[68:69]
s_waitcnt lgkmcnt(0)
v_mov_b32 v16, s68
s_lshl_b32 s50, s2, 2
s_add_u32 s50, s50, {ST_OFF + 65536}
buffer_store_dword v16, v17, s[32:35], s50 offen
""")
    A(f"""
s_mov_b64 exec, -1
s_sub_u32 s48, s14, 30
s_mul_i32 s52, s48, {64*nfill}
s_add_u32 s50, s52, {64*nfill}
s_branch L_pfw
""")

    T0, T1, VO, VG, TMP, VH, VZ, VF, VP = 160, 161, 162, 163, 164, 165, 166, 80, 167
    ACC = 88
    A("L_fslow:"); flagspin("a", VF, VF+2, VZ); A("s_branch L_ffast")
    A.raw(".p2align 12")
    A(f"""
L_compute:
v_lshlrev_b32 v5, 4, v2
v_and_b32 v{VF+2}, 15, v2
v_lshlrev_b32 v{VF+2}, 7, v{VF+2}
v_add_u32 v{VF+2}, {DONE}, v{VF+2}
s_and_b32 s62, s15, 3
s_and_b32 s48, s14, 1
s_lshr_b32 s49, s14, 1
s_lshl_b32 s50, s48, 3
s_add_u32 s50, s50, s3
s_lshl_b32 s50, s50, 5
s_add_u32 s50, s50, s49
s_lshl_b32 s50, s50, 2
s_add_u32 s50, s50, {HINT}
v_lshl_add_u32 v{VH}, v0, 11, s50
s_lshl_b32 s50, s14, 8
s_add_u32 s50, s50, s3
s_lshl_b32 s50, s50, 2
s_add_u32 s50, s50, {HINT+64}
v_lshl_add_u32 v{VP}, v0, 7, s50
v_mov_b32 v{VZ}, {WS_BYTES}
v_cmp_gt_u32 vcc, 16, v0
v_bfe_u32 v16, v2, 4, 1
v_lshrrev_b32 v17, 5, v2
v_cndmask_b32 v{VH}, v{VZ}, v{VH}, vcc
v_cmp_gt_u32 vcc, 8, v0
v_bfe_u32 v18, v2, 2, 2
v_and_b32 v19, 3, v2
v_cndmask_b32 v{VP}, v{VZ}, v{VP}, vcc
v_mov_b32 v{VZ}, 0
v_lshrrev_b32 v12, 1, v18
s_lshr_b32 s50, s62, 1
v_lshl_add_u32 v11, v17, 2, v18
v_xor_b32 v13, s50, v12
v_lshl_add_u32 v11, v11, 1, v13
v_lshl_add_u32 v11, v11, 1, v16
v_lshl_add_u32 v11, v11, 2, v19
v_lshlrev_b32 v11, 3, v11
s_mul_i32 s51, s50, 28672
s_add_u32 s51, s51, {WD}
v_xor_b32 v{T1}, 64, v11
v_add_u32 v{T0}, s51, v11
v_add_u32 v{T1}, s51, v{T1}
s_lshl_b32 s51, s48, 1
s_and_b32 s52, s62, 1
s_add_u32 s52, s52, s51
s_lshl_b32 s52, s52, 3
s_add_u32 s52, s52, s3
s_lshl_b32 s52, s52, 1
s_add_u32 s52, s52, s50
s_mul_i32 s54, s52, 14336
s_add_u32 s55, s54, 4096
s_add_u32 s56, s54, 8192
s_add_u32 s57, s54, 12288
s_bfe_u32 s50, s3, 0x10001
s_add_u32 s51, s51, s50
s_lshl_b32 s51, s51, 9
s_add_u32 s51, s51, s49
s_lshl_b32 s51, s51, 1
s_lshr_b32 s50, s3, 2
s_add_u32 s51, s51, s50
s_lshl_b32 s51, s51, 1
s_and_b32 s61, s3, 1
s_add_u32 s51, s51, s61
s_lshl_b32 s58, s51, 5
s_lshr_b32 s50, s3, 1
s_cmp_eq_u32 s50, s62
s_cselect_b32 s61, s61, 2
s_lshl_b32 s50, s14, 17
s_lshl_b32 s51, s3, 11
s_add_u32 s50, s50, s51
s_add_u32 s50, s50, {IN_OFF}
s_lshl_b32 s51, s62, 15
s_add_u32 s52, s50, s51
s_add_u32 s53, s52, 16384
s_lshl_b32 s51, s3, 14
s_add_u32 s50, s50, s51
""")
    for i in range(7): A(f"s_xor_b32 s{16+i}, s50, {(i+1) << 11}")
    A(f"""
s_lshl_b32 s50, s62, 3
v_add_u32 v{VO}, s50, v3
v_bfe_u32 v{VG}, v2, 1, 1
v_bfe_u32 v13, v2, 2, 1
v_lshl_add_u32 v{VG}, v13, 1, v{VG}
v_lshl_add_u32 v{VG}, v{VG}, 5, v{VO}
v_and_b32 v13, 1, v2
v_lshl_add_u32 v{VG}, v{VG}, 1, v13
v_lshlrev_b32 v{VG}, 3, v{VG}
v_lshlrev_b32 v{VO}, 11, v{VO}
v_lshl_add_u32 v{VO}, v4, 2, v{VO}
s_lshl_b32 s50, s62, 12
v_add_u32 v3, s50, v5
v_xor_b32 v4, 0x2000, v3
s_waitcnt lgkmcnt(0)
""")
    A.srd(32, 12, WS_BYTES); A.srd(40, 46, 256); A.srd(36, 44, OUT_BYTES)
    A(f"""
s_cmp_lt_u32 s14, {NP1}
s_cbranch_scc1 L_cgo
s_cmp_lt_u32 s15, 4
s_cbranch_scc1 L_p2h
s_endpgm
L_cgo:
v_lshl_add_u32 v11, v17, 3, v18
v_lshl_add_u32 v11, v16, 4, v11
v_lshl_or_b32 v13, v16, 1, v12
v_xor_b32 v13, s62, v13
v_lshl_add_u32 v11, v11, 2, v13
v_lshl_add_u32 v11, v11, 2, v19
v_lshlrev_b32 v6, 3, v11
v_add_u32 v7, {3*SLOT}, v6
v_and_b32 v10, 31, v2
v_bfe_u32 v11, v2, 1, 3
v_xor_b32 v11, v17, v11
v_lshl_add_u32 v11, v10, 3, v11
s_lshr_b32 s51, s15, 2
s_add_u32 s50, s51, 4
s_lshl_b32 s50, s50, 12
v_lshl_add_u32 v8, v11, 4, s50
v_xor_b32 v9, 32, v8
v_xor_b32 v10, 64, v8
v_xor_b32 v11, 96, v8
v_add_u32 v12, {3*SLOT}, v8
v_add_u32 v13, {3*SLOT}, v9
v_add_u32 v14, {3*SLOT}, v10
v_add_u32 v15, {3*SLOT}, v11
s_lshl_b32 s60, s48, 1
s_add_u32 s60, s60, s51
s_lshl_b32 s60, s60, 3
s_add_u32 s60, s60, s3
s_mul_i32 s60, s60, 7
s_add_u32 s60, s60, s49
s_lshl_b32 s60, s60, 2
s_add_u32 s60, s60, s62
s_lshl_b32 s60, s60, 10
s_mov_b32 s23, 0
""")
    for r in list(range(48, 80, 2)) + list(range(ACC, ACC+16, 2)): A(f"v_mov_b64 v[{r}:{r+1}], 0")
    def hint(p): A(f"buffer_store_dword v{VZ}, v{VP if p else VH}, s[32:35], 0 offen sc1")
    def frag(c, ks): return 16 + (c & 1)*32 + ks*8
    def reads(c, ks):
        slot = c % NS
        hi = slot >= 3
        so = (slot - 3 if hi else slot)*SLOT
        f = frag(c, ks)
        A(f"ds_read_b64_tr_b16 v[{f}:{f+1}], v{7 if hi else 6} offset:{so + ks*4096}")
        A(f"ds_read_b64_tr_b16 v[{f+2}:{f+3}], v{7 if hi else 6} offset:{so + ks*4096 + 512}")
        A(f"ds_read_b128 v[{f+4}:{f+7}], v{(12 if hi else 8)+ks} offset:{so}")
    def mfma(c, ks):
        f = frag(c, ks)
        A(f"v_mfma_f32_32x32x16_bf16 v[{ACC}:{ACC+15}], v[{f}:{f+3}], v[{f+4}:{f+7}], v[{ACC}:{ACC+15}]")
    A("L_main:")
    for c in range(4):
        A("s_waitcnt lgkmcnt(0)")
        if allb: A("s_mov_b32 m0, s23\ns_add_u32 s23, s23, 1\nv_writelane_b32 v159, s66, m0")
        elif c == 0: A("s_add_u32 s23, s23, 4")
        A("s_barrier")
        if allb: A("s_memrealtime s[66:67]")
        elif stamps and c == 3: A("s_mov_b32 s66, s84\ns_mov_b32 s84, s86\ns_mov_b32 s86, s68\ns_memrealtime s[68:69]" + ("\ns_mov_b32 s100, s99\ns_mov_b32 s99, s101\ns_mov_b32 s101, s96\ns_memtime s[96:97]" if clk else ""))
        for ks in range(4):
            reads(c, ks)
            mfma(c-1, ks)
    A("s_cmp_lt_u32 s23, 16\ns_cbranch_scc1 L_main")
    flagload(VF, VF+2, VZ)
    if allb:
        A("s_mov_b32 m0, s23\ns_waitcnt lgkmcnt(0)\nv_writelane_b32 v159, s66, m0\ns_nop 3")
        for k in range(16): A(f"v_readlane_b32 s{66+2*k}, v159, {k+1}")
    for ks in range(4):
        A(f"s_waitcnt lgkmcnt({0 if stamps else 9-3*ks})")
        mfma(15, ks)
    A(f"""
s_mov_b32 s50, {f32hex(GELU_C1)}
s_mov_b32 s51, s50
s_mov_b32 s24, 0xffff0000
v_mov_b32 v60, {f32hex(GELU_C0)}
v_mov_b32 v61, {f32hex(GELU_C0)}
s_nop 7
""")
    def pr(r): return f"v[{r}:{r+1}]"
    for p in range(8):
        A(f"v_cvt_pk_bf16_f32 v{32+p}, v{ACC+2*p}, v{ACC+1+2*p}")
    for p in range(8):
        A(f"v_lshlrev_b32 v{16+2*p}, 16, v{32+p}")
        A(f"v_and_b32 v{17+2*p}, s24, v{32+p}")
    for j in range(0, 8, 2): A(f"v_pk_mul_f32 {pr(32+j)}, {pr(16+j)}, {pr(16+j)}")
    for j in range(0, 8, 2): A(f"v_pk_fma_f32 {pr(32+j)}, {pr(32+j)}, s[50:51], v[60:61]")
    for j in range(0, 8, 2): A(f"v_pk_mul_f32 {pr(32+j)}, {pr(32+j)}, {pr(16+j)}")
    if hpos == 6:
        A("s_waitcnt vmcnt(0)"); flagfast(VF); hint(0)
    for j in range(8): A(f"v_exp_f32 v{32+j}, v{32+j}")
    if hpos == 5:
        A("s_waitcnt vmcnt(0)"); flagfast(VF); hint(0)
    for j in range(8): A(f"v_add_f32 v{32+j}, 1.0, v{32+j}")
    for j in range(8): A(f"v_rcp_f32 v{32+j}, v{32+j}")
    if hpos == 2:
        A("s_waitcnt vmcnt(0)"); flagfast(VF); hint(0)
    for j in range(0, 8, 2): A(f"v_pk_mul_f32 {pr(32+j)}, {pr(32+j)}, {pr(16+j)}")
    for p in range(4): A(f"v_cvt_pk_bf16_f32 v{40+p}, v{32+2*p}, v{33+2*p}")
    for p in range(4):
        A(f"v_lshlrev_b32 v{32+2*p}, 16, v{40+p}")
        A(f"v_and_b32 v{33+2*p}, s24, v{40+p}")
    for j in range(0, 8, 2): A(f"v_pk_mul_f32 {pr(32+j)}, {pr(32+j)}, {pr(24+j)}")
    for p in range(4): A(f"v_cvt_pk_bf16_f32 v{40+p}, v{32+2*p}, v{33+2*p}")
    for p in range(4): A(f"v_min_u32 v{40+p}, -2, v{40+p}")
    if hpos < 2:
        A("s_waitcnt vmcnt(0)"); flagfast(VF)
    if hpos == 1: hint(0)
    if nohs: A("s_sleep 16")
    A("buffer_store_dwordx4 v[40:43], v5, s[32:35], s60 offen sc1")
    if hpos == 0: hint(0)
    stamp(3)
    A(f"""
s_cmp_lt_u32 s15, 4
s_barrier
s_cbranch_scc1 L_p2
s_barrier
s_endpgm
L_p2h:
s_barrier
buffer_load_dword v{VF+1}, v{VZ}, s[40:43], 0 offen sc1
s_waitcnt vmcnt(0)
L_p2:
s_mov_b32 s59, 0
s_mov_b32 s24, 0xffffff00
""")
    pass
    gat = [16, 17, 18, 19, 20, 21, 22]
    AF = 104; HB = 16; A2 = 72
    def areads(j):
        for t_ in range(2):
            for q in range(2):
                r = AF + 8*(j % 7) + 4*t_ + 2*q
                A(f"ds_read_b64_tr_b16 v[{r}:{r+1}], v{T0+t_} offset:{(16*j+8*q)*128}")
    A("L_retry:")
    for j in range(7): areads(j)
    A(f"""
s_cmp_lg_u32 s59, 0
s_cbranch_scc1 L_sweep
v_readfirstlane_b32 s50, v{VF+1}
v_and_b32 v12, 1, v2
v_cmp_eq_u32 vcc, 1, v12
s_and_b32 s51, s50, 0xff
v_mov_b32 v6, s51
s_bfe_u32 s51, s50, 0x80008
v_mov_b32 v7, s51
s_bfe_u32 s51, s50, 0x80010
v_mov_b32 v8, s51
s_lshr_b32 s51, s50, 24
v_mov_b32 v9, s51
v_cndmask_b32 v10, v6, v8, vcc
v_cndmask_b32 v11, v7, v9, vcc
s_barrier
""")
    stamp(5)
    A("L_sweep:")
    def hload(j): A(f"buffer_load_dwordx4 v[{HB+4*j}:{HB+4*j+3}], v5, s[32:35], s{54+j//4} offen offset:{(j%4)*1024} sc1")
    for j in range(LA): hload(j)
    A(f"s_waitcnt lgkmcnt(0)\nv_mov_b32 v{TMP}, 0")
    for j in range(14):
        w = f"s_waitcnt vmcnt({min(13, j+LA-1) - j})"
        if j >= 7: w += f" lgkmcnt({min(12, 4*(13-j))})"
        A(w)
        for t_ in (1, 0):
            src = "0" if j == 0 else f"v[{A2+16*t_}:{A2+16*t_+15}]"
            a = AF + 8*(j % 7) + 4*t_
            A(f"v_mfma_f32_32x32x16_bf16 v[{A2+16*t_}:{A2+16*t_+15}], v[{a}:{a+3}], v[{HB+4*j}:{HB+4*j+3}], {src}")
            if t_ == 1:
                if j + LA < 14: hload(j + LA)
                A(f"v_max3_u32 v{TMP}, v{HB+4*j}, v{HB+4*j+1}, v{TMP}")
                A(f"v_max3_u32 v{TMP}, v{HB+4*j+2}, v{HB+4*j+3}, v{TMP}")
        if j == pj: hint(1)
        if j < 7: areads(j + 7)
    A(f"""
v_cmp_eq_u32 vcc, -1, v{TMP}
s_add_u32 s59, s59, 1
s_cbranch_vccz L_swok
s_cmp_lt_u32 s59, {SPIN}
s_cbranch_scc1 L_retry
L_swok:
""")
    if ppos == -1: hint(1)
    stamp(6)
    if stamps: A("s_mov_b32 s98, s59")
    A("s_nop 5")
    for q in range(4):
        A(f"ds_write_b128 v3, v[{A2+16+4*q}:{A2+19+4*q}] offset:{q*1024}")
    A("s_waitcnt lgkmcnt(0)\ns_barrier")
    for q in range(4):
        A(f"ds_read_b128 v[{16+4*q}:{19+4*q}], v4 offset:{q*1024}")
    if ppos == 0: hint(1)
    for hf in range(2):
        for q in (2*hf, 2*hf+1):
            A(f"s_waitcnt lgkmcnt({3-q})")
            for e in range(0, 4, 2):
                A(f"v_pk_add_f32 {pr(16+4*q+e)}, {pr(16+4*q+e)}, {pr(A2+4*q+e)}")
        A(f"s_cmp_eq_u32 s61, {hf}\ns_cbranch_scc1 L_own{hf}")
        for q in (2*hf, 2*hf+1):
            for e in range(4):
                A(f"v_and_or_b32 v{16+4*q+e}, v{16+4*q+e}, s24, v{6+e}")
            A(f"buffer_store_dwordx4 v[{16+4*q}:{19+4*q}], v5, s[32:35], s{52+hf} offen offset:{(q%2)*1024} sc1")
        A(f"L_sent{hf}:")
    if ppos == 4: hint(1)
    stamp(7)
    if bs: A("s_barrier")
    A("s_mov_b32 s59, 0\ns_waitcnt lgkmcnt(0)\ns_barrier")
    stamp(12)
    A("ds_read_b64 v[46:47], v163 offset:16384\nL_gat:")
    for s in range(7):
        A(f"buffer_load_dwordx2 v[{32+2*s}:{33+2*s}], v{VG}, s[32:35], s{gat[s]} offen sc1")
    A(f"s_add_u32 s59, s59, 1\ns_cmp_ge_u32 s59, {SPIN}")
    for s in range(7):
        A(f"s_waitcnt vmcnt({6-s})\nv_xor_b32 v{32+2*s}, v{32+2*s}, v10\nv_xor_b32 v{33+2*s}, v{33+2*s}, v11")
        if s == 0: A(f"v_or_b32 v{TMP}, v32, v33")
        else: A(f"v_or3_b32 v{TMP}, v{TMP}, v{32+2*s}, v{33+2*s}")
    A(f"""
v_and_b32 v{TMP}, 0xff, v{TMP}
v_cmp_ne_u32 vcc, 0, v{TMP}
s_waitcnt lgkmcnt(0)
v_pk_add_f32 v[32:33], v[32:33], v[34:35]
v_pk_add_f32 v[36:37], v[36:37], v[38:39]
v_pk_add_f32 v[40:41], v[40:41], v[42:43]
v_pk_add_f32 v[44:45], v[44:45], v[46:47]
s_cbranch_scc1 L_gok
s_cbranch_vccnz L_gat
L_gok:
v_pk_add_f32 v[32:33], v[32:33], v[36:37]
v_pk_add_f32 v[40:41], v[40:41], v[44:45]
v_pk_add_f32 v[32:33], v[32:33], v[40:41]
v_cvt_pk_bf16_f32 v32, v32, v33
buffer_store_dword v32, v{VO}, s[36:39], s58 offen {outflags}
""")
    if stamps:
        stamp(8)
        A("s_branch L_stamps")
    A("L_fin:\ns_endpgm")
    for hf in range(2):
        A(f"""
L_own{hf}:
ds_write_b128 v5, v[{16+8*hf}:{19+8*hf}] offset:{OWN}
ds_write_b128 v5, v[{20+8*hf}:{23+8*hf}] offset:{OWN+1024}
s_waitcnt lgkmcnt(0)
s_branch L_sent{hf}
""")
    A("L_last:")
    if stamps:
        A("L_stamps:")
        A("s_waitcnt vmcnt(0)")
        stamp(9)
        A("s_waitcnt lgkmcnt(0)")
        for k in range(13): A(f"v_mov_b32 v{16+k}, s{64+2*k}")
        if allb:
            A("v_mov_b32 v29, s90\nv_mov_b32 v30, s92\nv_mov_b32 v31, s94\ns_bitcmp1_b32 s15, 0\ns_cselect_b32 s66, s96, s66\nv_mov_b32 v17, s66")
        else:
            A(("s_sub_u32 s99, s99, s100\ns_lshr_b32 s99, s99, 3\nv_mov_b32 v29, s99" if clk else "v_mov_b32 v29, 0") + "\nv_mov_b32 v30, s98\nv_mov_b32 v31, s59")
        A(f"""
s_lshl_b32 s50, s2, 8
s_lshl_b32 s51, s15, 6
s_add_u32 s50, s50, s51
s_add_u32 s50, s50, {ST_OFF}
v_mov_b32 v4, 0
v_cmp_eq_u32 vcc, 0, v2
s_and_saveexec_b64 s[56:57], vcc
buffer_store_dwordx4 v[16:19], v4, s[32:35], s50 offen
buffer_store_dwordx4 v[20:23], v4, s[32:35], s50 offen offset:16
buffer_store_dwordx4 v[24:27], v4, s[32:35], s50 offen offset:32
buffer_store_dwordx4 v[28:31], v4, s[32:35], s50 offen offset:48
s_endpgm
""")
    A.raw('.section .rodata,"a"')
    A.descriptor(KN, 168, 168)
    open(out, "w").write(A.text())
    import subprocess, re
    subprocess.run(["clang", "-x", "assembler", "-target", "amdgcn-amd-amdhsa", "-mcpu=gfx950", "-c", out, "-o", "_g.o"], check=True)
    d = subprocess.run(["llvm-objdump", "-d", "--mcpu=gfx950", "_g.o"], capture_output=True, text=True).stdout
    ad = {m.group(2): int(m.group(1), 16) for m in re.finditer(r"^([0-9a-f]+) <(\w+)>:", d, re.M)}
    size = ad["L_own1"] + 24 - ad["L_compute"]
    if size > 4096: print("WARNING: main page overflow", out, size)

if __name__ == "__main__":
    import calib_f as c
    E = "exp/"
    B = dict(hpos=1, outflags="sc1")
    gen(E+"v15.s", **B)
    gen(E+"v15t.s", touch=1, **B)
    gen(E+"v15_st.s", stamps=True, nost=(5,6,7,12), **B)
    gen(E+"v15f_st.s", stamps=True, **B)
    c.mk(E+"v15_st.s",E+"c15_0.s",9,0)
    c.mk(E+"v15_st.s",E+"c15_b7.s",10,10,nent=448)
    c.mk(E+"v15_st.s",E+"c15_hst.s",3,10,nent=448)
    c.mk(E+"v15_st.s",E+"c15_done.s",9,10)
    c.mk(E+"v15_st.s",E+"c15_retry.s",15,10,mode='cnt')
```

```python
import sys
from common import *

HINT    = 896*1024
DONE    = 0xF0000
IN_OFF  = 1 << 20
CLR_A   = 960*1024 // 16
ST_OFF  = 0x8000000
SLOT    = 24576
SPIN    = 1 << 16
NP1     = 14
WD      = 2*SLOT
PHYS    = [2*SLOT, 3*SLOT, 0, SLOT]
OWN     = 32768
TRS     = 36864
LDS_SZ  = WD + 896*128

def gen(out, stamps=False, nost=(), outflags="sc1", hpos=-2, ppos=-2, LA=6, wdp=(16, 24, 0), nfill=10, ftouch=True,
        m16=False, nolag=True, clk=False, be=False, tr=True):
    A = Asm()
    A.raw(HEADER_COMMENT.rstrip())
    A.raw(f"; @launch grid=(256,1,1) block=(576,1,1) lds={LDS_SZ}")
    A.raw('.amdgcn_target "amdgcn-amd-amdhsa--gfx950"')
    A.raw(".text")
    A.kernel_start(KN)
    def stamp(k):
        if stamps and k not in nost: A(f"s_memrealtime s[{64+2*k}:{65+2*k}]")
    def agent_setup():
        A(f"""
v_lshlrev_b32 v6, 2, v5
v_xor_b32 v6, v4, v6
v_lshlrev_b32 v7, 11, v3
s_and_b32 s49, s3, 1
s_lshl_b32 s49, s49, 10
s_lshr_b32 s51, s14, 2
s_lshl_b32 s51, s51, 7
v_add_u32 v7, s51, v7
v_lshl_add_u32 v20, v6, 4, v7
v_add_u32 v21, {16384-1024}, v20
v_add_u32 v22, {2*(16384-1024)}, v20
v_add_u32 v23, {3*(16384-1024)}, v20
s_lshr_b32 s58, s3, 1
s_mul_i32 s58, s58, {896*2048}
s_add_u32 s58, s58, s49
v_and_b32 v24, 15, v2
v_lshlrev_b32 v24, 7, v24
v_add_u32 v24, {DONE}, v24
v_mov_b32 v25, 0
s_lshl_b32 s50, s2, 8
s_add_u32 s50, s50, {HINT}
s_add_u32 s36, s12, s50
s_addc_u32 s37, s13, 0
""")
        A.srd(28, 10, W_BYTES); A.srd(32, 12, WS_BYTES)
    lc = [0]
    def wd_loop(n):
        A(f"s_add_u32 s61, s60, {n*65536}\nL_wd{lc[0]}:")
        for q in range(4):
            A(f"buffer_load_dwordx4 v{20+q}, s[28:31], s60 offen offset:{q*1024} lds")
        A(f"s_add_u32 m0, m0, 4096\ns_add_u32 s60, s60, 65536\ns_cmp_lt_u32 s60, s61\ns_cbranch_scc1 L_wd{lc[0]}")
        lc[0] += 1
    def hintwait(tag, loads, regs, base=36):
        A(f"s_mov_b32 s59, 0\nL_h{tag}:")
        for r, w, off in loads: A(f"s_load_dwordx{w} s[{r}:{r+w-1}], s[{base}:{base+1}], {off} glc")
        A(f"s_add_u32 s59, s59, 1\ns_cmp_ge_u32 s59, {SPIN}\ns_waitcnt lgkmcnt(0)\ns_cbranch_scc1 L_hok{tag}")
        for k in regs[1:]: A(f"s_max_u32 s{regs[0]}, s{regs[0]}, s{k}")
        A(f"s_cmp_eq_u32 s{regs[0]}, -1\ns_cbranch_scc1 L_h{tag}\nL_hok{tag}:")
    def flagload(vf, va, vz):
        A(f"buffer_load_dword v{vf+1}, v{vz}, s[40:43], 0 offen sc1\nbuffer_load_dword v{vf}, v{va}, s[32:35], 0 offen sc1")
    def flagtest(vf):
        A(f"v_cmp_ne_u32 vcc, v{vf}, v{vf+1}\nv_cmp_eq_u32 s[26:27], 0, v{vf+1}\ns_or_b64 vcc, vcc, s[26:27]")
    def flagspin(tag, vf, va, vz):
        A(f"s_mov_b32 s59, 0\nL_f{tag}:")
        flagtest(vf)
        A(f"""
s_cbranch_vccz L_fok{tag}
s_add_u32 s59, s59, 1
s_cmp_ge_u32 s59, {SPIN}
s_cbranch_scc1 L_fok{tag}
s_sleep 8
""")
        flagload(vf, va, vz)
        A(f"s_waitcnt vmcnt(0)\ns_branch L_f{tag}\nL_fok{tag}:")
    stamp(0)
    A(f"""
s_load_dwordx8 s[4:11], s[0:1], 0
s_load_dwordx4 s[44:47], s[0:1], 32
s_load_dwordx2 s[12:13], s[0:1], 48
s_cmp_ge_u32 s2, 256
s_cbranch_scc1 L_end
v_lshrrev_b32 v1, 6, v0
v_and_b32 v2, 63, v0
s_and_b32 s3, s2, 7
v_readfirstlane_b32 s15, v1
s_lshr_b32 s14, s2, 3
v_lshrrev_b32 v3, 3, v2
v_and_b32 v4, 7, v2
v_bfe_u32 v5, v2, 4, 1
s_cmp_lg_u32 s15, 8
s_cbranch_scc1 L_compute
s_cmp_ge_u32 s14, {NP1}
s_cbranch_scc1 L_help_ld
""")
    A(f"""
s_lshr_b32 s49, s14, 1
s_mul_i32 s50, s3, 7
s_add_u32 s50, s49, s50
v_lshlrev_b32 v6, 1, v5
v_xor_b32 v6, v4, v6
v_mul_u32_u24 v7, 7168, v3
s_lshl_b32 s50, s50, 7
v_add_u32 v7, s50, v7
v_lshl_add_u32 v8, v6, 4, v7
v_xor_b32 v6, 4, v6
v_lshl_add_u32 v10, v6, 4, v7
""")
    if m16:
        A(f"v_add_u32 v9, {8*7168-1024}, v10\nv_mov_b32 v10, v8\nv_mov_b32 v11, v9")
    else:
        A(f"v_add_u32 v9, {8*7168-1024}, v8\nv_add_u32 v11, {8*7168-1024}, v10")
    A(f"""
v_lshrrev_b32 v6, 1, v3
v_xor_b32 v6, v4, v6
s_and_b32 s50, s14, 1
s_lshl_b32 s50, s50, 6
v_add_u32 v7, s50, v3
v_lshlrev_b32 v7, 11, v7
v_lshl_add_u32 v12, v6, 4, v7
v_xor_b32 v13, 64, v12
v_add_u32 v14, {2*(16384-1024)}, v12
v_add_u32 v15, {3*(16384-1024)}, v13
v_add_u32 v13, {16384-1024}, v13
s_mov_b32 s52, {PHYS[0]}
s_mov_b32 s56, 0
s_mov_b32 s57, 0
s_waitcnt lgkmcnt(0)
""")
    A.srd(20, 6, W_BYTES)
    A(f"s_sub_u32 s24, s8, 2048\ns_subb_u32 s25, s9, 0\ns_and_b32 s25, s25, 0xffff\ns_mov_b32 s26, {W_BYTES+2048}\ns_mov_b32 s27, 0x20000")
    A.srd(16, 4, X_BYTES)
    A("L_item:\ns_mov_b32 m0, s52\ns_add_u32 s53, s56, 65536")
    for l in range(4):
        A(f"""
buffer_load_dwordx4 v8, s[20:23], s57 offen lds
buffer_load_dwordx4 v9, s[20:23], s57 offen offset:1024 lds
buffer_load_dwordx4 v10, s[24:27], s57 offen offset:2048 lds
buffer_load_dwordx4 v11, s[24:27], s57 offen offset:3072 lds
s_add_u32 m0, m0, 4096
s_add_u32 s57, s57, {16*7168}
""")
    for g, sr in enumerate((56, 53)):
        A(f"""
buffer_load_dwordx4 v12, s[16:19], s{sr} offen lds
buffer_load_dwordx4 v13, s[16:19], s{sr} offen offset:1024 lds
buffer_load_dwordx4 v14, s[16:19], s{sr} offen offset:2048 lds
buffer_load_dwordx4 v15, s[16:19], s{sr} offen offset:3072 lds
""")
        if g == 0: A(f"s_add_u32 m0, m0, 4096\ns_add_u32 s52, s52, {SLOT}")
    A(f"""
s_cmp_eq_u32 s52, {4*SLOT}
s_cmov_b32 s52, 0
s_add_u32 s56, s56, 128
s_cmp_lt_u32 s56, {128*3}
s_cbranch_scc1 L_item
s_cmp_lt_u32 s56, {128*16}
s_waitcnt vmcnt(48)
s_barrier
s_cbranch_scc1 L_item
""")
    assert all(n % 4 == 0 for n in wdp) and wdp[0] <= 39 and wdp[0] + wdp[1] <= 63 and sum(wdp) <= 64
    agent_setup()
    A(f"s_mov_b32 m0, {WD + 384*128}\ns_add_u32 s60, s58, {384*2048}")
    wd_loop(wdp[0]//4)
    A(f"s_waitcnt vmcnt({24 + wdp[0]})\ns_barrier")
    wd_loop(wdp[1]//4)
    A(f"s_waitcnt vmcnt({wdp[0] + wdp[1]})\ns_barrier")
    if wdp[2]: wd_loop(wdp[2]//4)
    if be: A("s_barrier")
    if sum(wdp) < 64: wd_loop(16 - sum(wdp)//4)
    A(f"s_mov_b32 m0, {WD}\ns_mov_b32 s60, s58")
    wd_loop(12)
    if not be: A("s_barrier")
    A("s_waitcnt vmcnt(0)\nL_agent:\ns_barrier\ns_barrier")
    hintwait("b", [(84, 4, 64)], [84, 85, 86, 87])
    A("s_barrier\nL_end:\ns_endpgm")
    A(f"""
L_help_ld:
s_cmp_ge_u32 s14, 30
s_cbranch_scc1 L_fill
s_sub_u32 s48, s14, {NP1}
s_cmp_ge_u32 s48, 14
s_cbranch_scc1 L_pfx
s_cmp_ge_u32 s48, 7
s_cselect_b32 s49, 7, 0
s_sub_u32 s49, s48, s49
s_lshl_b32 s49, s49, 6
v_add_u32 v6, s49, v2
v_mul_u32_u24 v7, 9363, v6
v_lshrrev_b32 v7, 16, v7
v_mul_u32_u24 v8, 7, v7
v_sub_u32 v8, v6, v8
v_mul_u32_u24 v7, 7168, v7
v_lshl_add_u32 v6, v8, 7, v7
s_mul_i32 s49, s3, 896
v_add_u32 v6, s49, v6
s_mov_b32 s50, {64*7168}
s_cmp_ge_u32 s48, 7
s_waitcnt lgkmcnt(0)
s_cselect_b32 s20, s8, s6
s_cselect_b32 s21, s9, s7
s_mov_b32 s22, {W_BYTES}
s_branch L_pfgo
L_pfx:
s_sub_u32 s49, s48, 14
s_lshl_b32 s49, s49, 6
v_add_u32 v6, s49, v2
v_lshlrev_b32 v6, 11, v6
s_mov_b32 s50, 128
s_waitcnt lgkmcnt(0)
s_mov_b32 s20, s4
s_mov_b32 s21, s5
s_mov_b32 s22, {X_BYTES}
L_pfgo:
s_and_b32 s21, s21, 0xffff
s_mov_b32 s23, 0x20000
s_mov_b32 s51, 0
""")
    for c in range(16):
        A(f"buffer_load_dword v16, v6, s[20:23], s51 offen" + ("\ns_add_u32 s51, s51, s50" if c < 15 else ""))
    agent_setup(); A.srd(40, 46, 256)
    if ftouch: flagload(26, 24, 25)
    nrest = 56 - 2*nfill
    A(f"""
s_mul_i32 s52, s48, {nrest}
s_add_u32 s50, s52, {nrest}
s_lshr_b32 s52, s52, 4
s_lshr_b32 s50, s50, 4
s_add_u32 s52, s52, {2*nfill}
s_add_u32 s50, s50, {2*nfill}
L_pfw:
v_lshrrev_b32 v6, 2, v2
v_and_b32 v7, 3, v2
v_lshl_add_u32 v6, v6, 4, v7
v_lshlrev_b32 v6, 7, v6
s_lshl_b32 s52, s52, 15
s_lshl_b32 s50, s50, 15
s_add_u32 s52, s52, s58
s_add_u32 s50, s50, s58
L_pfw1:
buffer_load_dword v30, v6, s[28:31], s52 offen
s_add_u32 s52, s52, 32768
s_cmp_lt_u32 s52, s50
s_cbranch_scc1 L_pfw1
s_and_b32 s52, s14, 3
s_mov_b32 s53, 0
L_wdq:
s_mul_i32 s60, s52, 28672
s_add_u32 m0, s60, {WD}
s_lshl_b32 s60, s60, 4
s_add_u32 s60, s60, s58
""")
    wd_loop(7)
    A(f"""
s_add_u32 s52, s52, 1
s_and_b32 s52, s52, 3
s_add_u32 s53, s53, 1
s_cmp_lt_u32 s53, 4
s_cbranch_scc1 L_wdq
""")
    flagload(26, 24, 25); A("s_waitcnt vmcnt(0)")
    flagspin("b", 26, 24, 25)
    A("s_barrier\ns_branch L_agent")
    A(f"""
L_fill:
s_memrealtime s[62:63]
v_lshlrev_b32 v12, 4, v2
v_mov_b32 v8, -1
v_mov_b32 v9, -1
v_mov_b32 v10, -1
v_mov_b32 v11, -1
s_sub_u32 s54, s2, 240
s_mul_i32 s55, s54, {CLR_A}
s_add_u32 s56, s55, {CLR_A}
s_lshl_b32 s54, s54, 7
s_add_u32 s54, s54, {DONE}
v_mov_b32 v17, 0
s_waitcnt lgkmcnt(0)
""")
    A.srd(32, 12, WS_BYTES); A.srd(40, 46, 256)
    A(f"""
s_cmp_lg_u32 s2, 240
s_cbranch_scc1 L_clr0
s_mul_i32 s62, s62, 0x9e3779b1
s_and_b32 s62, s62, 0xfefefefe
s_or_b32 s62, s62, 0x00010001
v_mov_b32 v16, s62
s_mov_b64 exec, 1
buffer_store_dword v16, v17, s[40:43], 0 offen sc1
s_mov_b64 exec, -1
L_clr0:
""")
    for q in range(4): A(f"buffer_store_dwordx4 v[8:11], v12, s[32:35], s55 offen offset:{q*1024} sc1")
    A(f"""
s_add_u32 s55, s55, 4096
s_cmp_lt_u32 s55, s56
s_cbranch_scc1 L_clr0
s_mov_b32 s59, 0
L_getn:
buffer_load_dword v16, v17, s[40:43], 0 offen sc1
s_add_u32 s59, s59, 1
s_cmp_ge_u32 s59, {SPIN}
s_waitcnt vmcnt(0)
v_cmp_eq_u32 vcc, 0, v16
s_cbranch_scc1 L_gotn
s_cbranch_vccnz L_getn
L_gotn:
v_mov_b32 v17, v16
v_mov_b32 v18, v16
v_mov_b32 v19, v16
s_mov_b64 exec, 0xff
buffer_store_dwordx4 v[16:19], v12, s[32:35], s54 offen sc1
s_mov_b64 exec, -1
""")
    agent_setup()
    A(f"""
s_sub_u32 s48, s14, 30
s_mul_i32 s52, s48, {nfill}
s_add_u32 s50, s52, {nfill}
s_branch L_pfw
""")

    T0, T1, VO, VG, TMP, VH, VZ, VP, VF = 160, 161, 162, 163, 164, 165, 166, 167, 80
    VS, VL, VT = 84, 85, 86
    ACC = 88
    A(f"""
L_compute:
v_lshlrev_b32 v5, 4, v2
v_and_b32 v{VF+2}, 15, v2
v_lshlrev_b32 v{VF+2}, 7, v{VF+2}
v_add_u32 v{VF+2}, {DONE}, v{VF+2}
s_and_b32 s62, s15, 3
s_and_b32 s48, s3, 1
s_lshr_b32 s49, s3, 1
s_and_b32 s63, s14, 3
v_bfe_u32 v16, v2, 4, 1
v_lshrrev_b32 v17, 5, v2
v_bfe_u32 v18, v2, 2, 2
v_and_b32 v19, 3, v2
v_bfe_u32 v10, v2, 1, 3
v_and_b32 v11, 1, v2
v_lshl_add_u32 v{VH}, v10, 2, v11
v_lshl_add_u32 v{VH}, v{VH}, 3, v16
s_and_b32 s50, s14, 1
s_lshl_b32 s50, s50, 4
s_and_b32 s51, s3, 6
s_add_u32 s50, s50, s51
s_lshl_b32 s50, s50, 1
s_add_u32 s50, s50, s48
s_lshl_b32 s50, s50, 5
s_lshr_b32 s51, s14, 1
s_add_u32 s50, s50, s51
s_lshl_b32 s50, s50, 2
s_add_u32 s50, s50, {HINT}
v_lshl_add_u32 v{VH}, v{VH}, 8, s50
s_lshl_b32 s50, s14, 3
s_add_u32 s50, s50, s48
s_lshl_b32 s50, s50, 6
s_add_u32 s50, s50, s49
s_lshl_b32 s50, s50, 2
s_add_u32 s50, s50, {HINT+64}
v_lshl_add_u32 v{VP}, v0, 9, s50
v_mov_b32 v{VZ}, {WS_BYTES}
{"v_subrev_u32 v13, 448, v0" if hpos == -2 else "v_mov_b32 v13, v0"}
v_cmp_gt_u32 vcc, 32, v13
v_lshrrev_b32 v12, 1, v18
s_lshr_b32 s50, s62, 1
v_cndmask_b32 v{VH}, v{VZ}, v{VH}, vcc
v_cmp_gt_u32 vcc, 4, v0
v_lshl_add_u32 v11, v17, 2, v18
v_xor_b32 v13, s50, v12
v_cndmask_b32 v{VP}, v{VZ}, v{VP}, vcc
v_mov_b32 v{VZ}, 0
v_lshl_add_u32 v11, v11, 1, v13
s_and_b32 s50, s62, 1
v_xor_b32 v13, s50, v16
v_lshl_add_u32 v11, v11, 1, v13
v_lshl_add_u32 v11, v11, 2, v19
v_lshlrev_b32 v11, 3, v11
s_mul_i32 s51, s62, 28672
s_add_u32 s51, s51, {WD}
v_xor_b32 v{T1}, 64, v11
v_add_u32 v{T0}, s51, v11
v_add_u32 v{T1}, s51, v{T1}
s_lshl_b32 s52, s63, 2
s_add_u32 s52, s52, s49
s_lshl_b32 s52, s52, 2
s_add_u32 s52, s52, s62
s_mul_i32 s54, s52, 14336
s_add_u32 s55, s54, 4096
s_add_u32 s56, s54, 8192
s_add_u32 s57, s54, 12288
s_branch L_page
L_aend:
""")
    A.raw(".p2align 12")
    A(f"""
L_page:
s_lshl_b32 s51, s63, 2
s_add_u32 s51, s51, s49
s_lshl_b32 s51, s51, 4
s_add_u32 s51, s51, s48
s_lshl_b32 s51, s51, 3
s_lshr_b32 s50, s14, 2
s_add_u32 s51, s51, s50
s_lshl_b32 s58, s51, 7
s_lshl_b32 s50, s48, 5
s_add_u32 s50, s50, s14
s_lshl_b32 s50, s50, 4
s_add_u32 s50, s50, s49
s_lshl_b32 s50, s50, 11
s_add_u32 s50, s50, {IN_OFF}
s_lshl_b32 s51, s62, 9
s_add_u32 s52, s50, s51
v_lshl_add_u32 v{VG}, v2, 3, s51
s_lshl_b32 s51, s49, 13
s_add_u32 s50, s50, s51
s_xor_b32 s16, s50, 0x800
s_xor_b32 s17, s50, 0x1000
s_xor_b32 s18, s50, 0x1800
v_lshl_add_u32 v13, v17, 1, v16
v_and_b32 v{VO}, 1, v2
v_lshl_add_u32 v13, v13, 1, v{VO}
s_lshl_b32 s50, s62, 3
v_add_u32 v13, s50, v13
v_lshlrev_b32 v{VO}, {7 if tr else 11}, v10
v_lshl_add_u32 v{VO}, v13, 2, v{VO}
v_lshl_add_u32 v{VS}, v17, 3, v4
v_lshlrev_b32 v{VS}, 4, v{VS}
v_and_b32 v13, 3, v3
v_cmp_eq_u32 s[28:29], s49, v13
v_lshl_add_u32 v13, v13, 13, v{VS}
v_mov_b32 v11, {WS_BYTES}
s_lshl_b32 s50, s62, 9
v_add_u32 v{VL}, s50, v{VS}
v_cndmask_b32 v{VS}, v13, v11, s[28:29]
v_lshlrev_b32 v{VT}, 11, v3
v_lshl_add_u32 v{VT}, v4, 4, v{VT}
s_lshl_b32 s50, s62, 13
v_add_u32 v3, s50, v5
s_waitcnt lgkmcnt(0)
""")
    A.srd(32, 12, WS_BYTES); A.srd(40, 46, 256); A.srd(36, 44, OUT_BYTES)
    A(f"""
s_lshl_b32 s50, s2, 1
s_lshr_b32 s51, s62, 1
s_add_u32 s50, s50, s51
s_lshl_b32 s50, s50, 7
s_bitcmp1_b32 s62, 0
s_cselect_b32 s51, 12, 0
s_add_u32 s51, s51, {HINT}
s_add_u32 s50, s50, s51
s_add_u32 s20, s12, s50
s_addc_u32 s21, s13, 0
s_cmp_lt_u32 s14, {NP1}
s_cbranch_scc1 L_cgo
s_cmp_lt_u32 s15, 4
s_cbranch_scc1 L_p2f
s_endpgm
L_cgo:
s_lshr_b32 s51, s15, 2
s_add_u32 s50, s51, 4
s_lshl_b32 s50, s50, 12
""")
    if m16:
        A(f"""
v_lshl_add_u32 v11, v17, 5, v18
v_lshl_add_u32 v11, v16, 3, v11
v_lshl_or_b32 v13, v16, 1, v12
v_xor_b32 v13, s62, v13
v_lshl_add_u32 v11, v11, 2, v13
v_lshl_add_u32 v11, v11, 2, v19
v_lshlrev_b32 v6, 3, v11
v_add_u32 v7, {3*SLOT}, v6
v_lshrrev_b32 v11, 4, v2
v_xor_b32 v11, v11, v10
v_and_b32 v13, 15, v2
v_lshl_add_u32 v11, v13, 3, v11
v_lshl_add_u32 v8, v11, 4, s50
v_xor_b32 v9, 64, v8
v_add_u32 v12, {3*SLOT}, v8
v_add_u32 v14, {3*SLOT}, v9
v_lshl_add_u32 v13, v17, 4, v13
v_lshl_add_u32 v13, v16, 5, v13
v_lshlrev_b32 v4, 4, v13
v_mov_b32 v13, v14
""")
    else:
        A(f"""
v_lshl_add_u32 v11, v17, 3, v18
v_lshl_add_u32 v11, v16, 4, v11
v_lshl_or_b32 v13, v16, 1, v12
v_xor_b32 v13, s62, v13
v_lshl_add_u32 v11, v11, 2, v13
v_lshl_add_u32 v11, v11, 2, v19
v_lshlrev_b32 v6, 3, v11
v_add_u32 v7, {3*SLOT}, v6
v_xor_b32 v11, v17, v10
v_and_b32 v10, 31, v2
v_lshl_add_u32 v11, v10, 3, v11
v_lshl_add_u32 v8, v11, 4, s50
v_xor_b32 v9, 32, v8
v_xor_b32 v10, 64, v8
v_xor_b32 v11, 96, v8
v_add_u32 v12, {3*SLOT}, v8
v_add_u32 v13, {3*SLOT}, v9
v_add_u32 v14, {3*SLOT}, v10
v_add_u32 v15, {3*SLOT}, v11
""")
    A(f"""
s_and_b32 s60, s14, 1
s_lshl_b32 s60, s60, 1
s_add_u32 s60, s60, s51
s_lshl_b32 s60, s60, 3
s_add_u32 s60, s60, s3
s_mul_i32 s60, s60, 7
s_lshr_b32 s50, s14, 1
s_add_u32 s60, s60, s50
s_lshl_b32 s60, s60, 2
s_add_u32 s60, s60, s62
s_lshl_b32 s60, s60, 10
s_mov_b32 s23, 0
""")
    zr = list(range(ACC, ACC+16, 2)) + ([] if nolag else list(range(48, 80, 2)))
    for r in zr: A(f"v_mov_b64 v[{r}:{r+1}], 0")
    def hint(p): A(f"buffer_store_dword v{VZ}, v{VP if p else VH}, s[32:35], 0 offen sc1")
    def frag(c, ks): return 16 + (0 if nolag else (c & 1)*32) + ks*8
    def reads(c, ks):
        so = PHYS[c % 4]; hi = so >= 3*SLOT
        if hi: so -= 3*SLOT
        f = frag(c, ks)
        if m16:
            st, pt = ks >> 1, ks & 1
            o = so + st*8192 + pt*2048
            A(f"ds_read_b64_tr_b16 v[{f}:{f+1}], v{7 if hi else 6} offset:{o}")
            A(f"ds_read_b64_tr_b16 v[{f+2}:{f+3}], v{7 if hi else 6} offset:{o + 512}")
            A(f"ds_read_b128 v[{f+4}:{f+7}], v{(12 if hi else 8)+st} offset:{so + pt*2048}")
        else:
            A(f"ds_read_b64_tr_b16 v[{f}:{f+1}], v{7 if hi else 6} offset:{so + ks*4096}")
            A(f"ds_read_b64_tr_b16 v[{f+2}:{f+3}], v{7 if hi else 6} offset:{so + ks*4096 + 512}")
            A(f"ds_read_b128 v[{f+4}:{f+7}], v{(12 if hi else 8)+ks} offset:{so}")
    def mfma(c, ks, late=False):
        if m16:
            f0, f1 = frag(c, ks & 2), frag(c, (ks & 2) + 1)
            if late: pairs = [(0, 0)] if ks & 1 == 0 else [(0, 1), (1, 0), (1, 1)]
            else: pairs = [(0, 0), (0, 1)] if ks & 1 == 0 else [(1, 0), (1, 1)]
            for a, b in pairs:
                d = ACC + 8*a + 4*b
                fa, fb = (f0, f1)[a], (f0, f1)[b] + 4
                A(f"v_mfma_f32_16x16x32_bf16 v[{d}:{d+3}], v[{fa}:{fa+3}], v[{fb}:{fb+3}], v[{d}:{d+3}]")
        else:
            f = frag(c, ks)
            A(f"v_mfma_f32_32x32x16_bf16 v[{ACC}:{ACC+15}], v[{f}:{f+3}], v[{f+4}:{f+7}], v[{ACC}:{ACC+15}]")
    def bstamp():
        A("s_mov_b32 s66, s84\ns_mov_b32 s84, s86\ns_mov_b32 s86, s68\ns_memrealtime s[68:69]")
        if clk: A("s_mov_b32 s100, s99\ns_mov_b32 s99, s101\ns_mov_b32 s101, s96\ns_memtime s[96:97]")
    A("L_main:")
    for c in range(4):
        if not nolag: A("s_waitcnt lgkmcnt(0)")
        if c == 0: A("s_add_u32 s23, s23, 4")
        A("s_barrier")
        if nolag:
            for ks in range(4): reads(c, ks)
            for ks in range(4):
                A(f"s_waitcnt lgkmcnt({9-3*ks})"); mfma(c, ks, True)
            if stamps and c == 3: bstamp()
        else:
            if stamps and c == 3: bstamp()
            for ks in range(4):
                reads(c, ks)
                mfma(c-1, ks)
    A("s_cmp_lt_u32 s23, 16\ns_cbranch_scc1 L_main")
    flagload(VF, VF+2, VZ)
    if not nolag:
        for ks in range(4):
            A(f"s_waitcnt lgkmcnt({0 if stamps else 9-3*ks})")
            mfma(15, ks, True)
    A(f"""
s_mov_b32 s50, {f32hex(GELU_C1)}
s_mov_b32 s51, s50
s_mov_b32 s24, 0xffff0000
v_mov_b32 v60, {f32hex(GELU_C0)}
v_mov_b32 v61, {f32hex(GELU_C0)}
s_nop {3 if m16 else 7}
""")
    def pr(r): return f"v[{r}:{r+1}]"
    def flagfast():
        A("s_waitcnt vmcnt(0)"); flagtest(VF); A("s_cbranch_vccnz L_fslow\nL_ffast:")
    for p in range(8):
        A(f"v_cvt_pk_bf16_f32 v{32+p}, v{ACC+2*p}, v{ACC+1+2*p}")
    for p in range(8):
        A(f"v_lshlrev_b32 v{16+2*p}, 16, v{32+p}")
        A(f"v_and_b32 v{17+2*p}, s24, v{32+p}")
    for j in range(0, 8, 2): A(f"v_pk_mul_f32 {pr(32+j)}, {pr(16+j)}, {pr(16+j)}")
    for j in range(0, 8, 2): A(f"v_pk_fma_f32 {pr(32+j)}, {pr(32+j)}, s[50:51], v[60:61]")
    for j in range(0, 8, 2): A(f"v_pk_mul_f32 {pr(32+j)}, {pr(32+j)}, {pr(16+j)}")
    if hpos == 6: flagfast(); hint(0)
    for j in range(8): A(f"v_exp_f32 v{32+j}, v{32+j}")
    if hpos == 5: flagfast(); hint(0)
    for j in range(8): A(f"v_add_f32 v{32+j}, 1.0, v{32+j}")
    for j in range(8): A(f"v_rcp_f32 v{32+j}, v{32+j}")
    if hpos == 2: flagfast(); hint(0)
    for j in range(0, 8, 2): A(f"v_pk_mul_f32 {pr(32+j)}, {pr(32+j)}, {pr(16+j)}")
    for p in range(4): A(f"v_cvt_pk_bf16_f32 v{40+p}, v{32+2*p}, v{33+2*p}")
    for p in range(4):
        A(f"v_lshlrev_b32 v{32+2*p}, 16, v{40+p}")
        A(f"v_and_b32 v{33+2*p}, s24, v{40+p}")
    for j in range(0, 8, 2): A(f"v_pk_mul_f32 {pr(32+j)}, {pr(32+j)}, {pr(24+j)}")
    for p in range(4): A(f"v_cvt_pk_bf16_f32 v{40+p}, v{32+2*p}, v{33+2*p}")
    for p in range(4): A(f"v_min_u32 v{40+p}, -2, v{40+p}")
    if hpos < 2: flagfast()
    if hpos == 1: hint(0)
    if m16:
        A("s_nop 1\nv_permlane32_swap_b32 v40, v42\nv_permlane32_swap_b32 v41, v43\nbuffer_store_dwordx4 v[40:43], v4, s[32:35], s60 offen sc1")
    else:
        A("buffer_store_dwordx4 v[40:43], v5, s[32:35], s60 offen sc1")
    if hpos in (0, -2): hint(0)
    stamp(3)
    A(f"""
s_cmp_lt_u32 s15, 4
s_cbranch_scc1 L_p2f
s_barrier
s_barrier
s_endpgm
L_p2f:
s_barrier
s_mov_b32 s24, 0xffffff00
v_and_b32 v12, 1, v2
v_mov_b32 v13, v{VS}
v_mov_b32 v14, v{VL}
v_mov_b32 v15, v{VT}
buffer_load_dword v4, v{VZ}, s[40:43], 0 offen sc1
""")
    if hpos == -1:
        A(f"s_cmp_ge_u32 s14, {NP1}\ns_cbranch_scc1 L_nohint"); hint(0); A("L_nohint:")
    hintwait("a", [(40, 4, 0)], [40, 41, 42, 43], base=20)
    A("s_mov_b32 s59, 0")
    stamp(5)
    AF = 104; HB = 16; A2 = 72
    def areads(j):
        for t_ in range(2):
            for q in range(2):
                r = AF + 8*(j % 7) + 4*t_ + 2*q
                A(f"ds_read_b64_tr_b16 v[{r}:{r+1}], v{T0+t_} offset:{(16*j+8*q)*128}")
    def hload(j): A(f"buffer_load_dwordx4 v[{HB+4*j}:{HB+4*j+3}], v5, s[32:35], s{54+j//4} offen offset:{(j%4)*1024} sc1")
    A("L_sweep:")
    for j in range(LA): hload(j)
    A("s_cmp_lg_u32 s59, 0\ns_cbranch_scc1 L_nobw\ns_barrier\nL_nobw:")
    stamp(4)
    for j in range(7): areads(j)
    A(f"v_mov_b32 v{TMP}, 0")
    nds = 28
    for j in range(14):
        last = 4*j + 4
        A(f"s_waitcnt vmcnt({min(13, j+LA-1) - j}) lgkmcnt({min(15, nds - last)})")
        for t_ in (1, 0):
            src = "0" if j == 0 else f"v[{A2+16*t_}:{A2+16*t_+15}]"
            a = AF + 8*(j % 7) + 4*t_
            A(f"v_mfma_f32_32x32x16_bf16 v[{A2+16*t_}:{A2+16*t_+15}], v[{a}:{a+3}], v[{HB+4*j}:{HB+4*j+3}], {src}")
            if t_ == 1:
                if j + LA < 14: hload(j + LA)
                A(f"v_max3_u32 v{TMP}, v{HB+4*j}, v{HB+4*j+1}, v{TMP}")
                A(f"v_max3_u32 v{TMP}, v{HB+4*j+2}, v{HB+4*j+3}, v{TMP}")
        if j < 7: areads(j + 7); nds += 4
        if j == 8:
            A("v_and_b32 v6, 0xff, v4\nv_bfe_u32 v7, v4, 8, 8\nv_bfe_u32 v8, v4, 16, 8\nv_cmp_eq_u32 vcc, 1, v12")
        if j == 9:
            A("v_lshrrev_b32 v9, 24, v4\nv_cndmask_b32 v10, v6, v8, vcc\nv_cndmask_b32 v11, v7, v9, vcc")
    A(f"""
v_cmp_eq_u32 vcc, -1, v{TMP}
s_add_u32 s59, s59, 1
s_cbranch_vccz L_swok
s_cmp_lt_u32 s59, {SPIN}
s_cbranch_scc1 L_sweep
L_swok:
""")
    if ppos == -1: hint(1)
    stamp(6)
    if stamps: A("s_mov_b32 s98, s59")
    A("v_xor_b32 v16, 0x4000, v3\nv_xor_b32 v17, 0x6000, v3\nv_xor_b32 v18, 0x2000, v3\ns_nop 3")
    for e, va in ((2, 16), (3, 17), (1, 18)):
        for g in range(2):
            r = A2 + 8*e + 4*g
            A(f"ds_write_b128 v{va}, v[{r}:{r+3}] offset:{e*2048 + g*1024}")
    if ppos == -2: hint(1)
    A("s_waitcnt lgkmcnt(0)\ns_barrier")
    for g in range(2):
        for e in (1, 2, 3):
            A(f"ds_read_b128 v[{16+12*g+4*(e-1)}:{19+12*g+4*(e-1)}], v3 offset:{e*2048 + g*1024}")
    if ppos == 0: hint(1)
    for g in range(2):
        b = 16 + 12*g
        A(f"s_waitcnt lgkmcnt({4-3*g})")
        for e in (0, 2): A(f"v_pk_add_f32 {pr(b+e)}, {pr(b+e)}, {pr(A2+4*g+e)}")
        A(f"s_waitcnt lgkmcnt({3-3*g})")
        for e in (0, 2): A(f"v_pk_add_f32 {pr(b+4+e)}, {pr(b+4+e)}, {pr(b+8+e)}")
        for e in (0, 2): A(f"v_pk_add_f32 {pr(b+e)}, {pr(b+e)}, {pr(b+4+e)}")
        for e in range(4): A(f"v_and_or_b32 v{b+4+e}, v{b+e}, s24, v{6+e}")
        A(f"buffer_store_dwordx4 v[{b+4}:{b+7}], v13, s[32:35], s52 offen offset:{g*256} sc1")
    A(f"""
s_mov_b64 exec, s[28:29]
ds_write_b128 v14, v[16:19] offset:{OWN}
ds_write_b128 v14, v[28:31] offset:{OWN+256}
s_mov_b64 exec, -1
""")
    if ppos == 4: hint(1)
    stamp(7)
    A(f"ds_read_b64 v[46:47], v{VG} offset:{OWN}\ns_mov_b32 s59, 0\ns_barrier")
    stamp(12)
    A("L_gat:")
    for s in range(3):
        A(f"buffer_load_dwordx2 v[{40+2*s}:{41+2*s}], v{VG}, s[32:35], s{16+s} offen sc1")
    A(f"s_add_u32 s59, s59, 1\ns_cmp_ge_u32 s59, {SPIN}\ns_waitcnt vmcnt(0)")
    for s in range(3):
        A(f"v_xor_b32 v{40+2*s}, v{40+2*s}, v10\nv_xor_b32 v{41+2*s}, v{41+2*s}, v11")
    A(f"""
v_or3_b32 v{TMP}, v40, v41, v42
v_or3_b32 v{TMP}, v{TMP}, v43, v44
v_or_b32 v{TMP}, v{TMP}, v45
v_and_b32 v{TMP}, 0xff, v{TMP}
v_cmp_ne_u32 vcc, 0, v{TMP}
s_waitcnt lgkmcnt(0)
v_pk_add_f32 v[40:41], v[40:41], v[42:43]
v_pk_add_f32 v[44:45], v[44:45], v[46:47]
s_cbranch_scc1 L_gok
s_cbranch_vccnz L_gat
L_gok:
v_pk_add_f32 v[40:41], v[40:41], v[44:45]
v_cvt_pk_bf16_f32 v40, v40, v41
""")
    if tr:
        A(f"""
ds_write_b32 v{VO}, v40 offset:{TRS}
s_cmp_lg_u32 s62, 0
s_waitcnt lgkmcnt(0)
s_barrier
s_cbranch_scc1 L_fin
ds_read_b128 v[40:43], v5 offset:{TRS}
s_waitcnt lgkmcnt(0)
buffer_store_dwordx4 v[40:43], v15, s[36:39], s58 offen {outflags}
L_fin:
""")
    else:
        A(f"buffer_store_dword v40, v{VO}, s[36:39], s58 offen {outflags}")
    if stamps:
        stamp(8)
        A("s_branch L_stamps")
    else: A("s_endpgm")
    A("L_fslow:"); flagspin("a", VF, VF+2, VZ); A("s_branch L_ffast")
    if stamps:
        A("L_stamps:\ns_waitcnt vmcnt(0)")
        stamp(9)
        A("s_waitcnt lgkmcnt(0)")
        for k in range(13): A(f"v_mov_b32 v{16+k}, s{64+2*k}")
        A(("s_sub_u32 s99, s96, s99\nv_mov_b32 v29, s99" if clk else "v_mov_b32 v29, 0") + "\nv_mov_b32 v30, s98\nv_mov_b32 v31, s59")
        A(f"""
s_lshl_b32 s50, s2, 8
s_lshl_b32 s51, s15, 6
s_add_u32 s50, s50, s51
s_add_u32 s50, s50, {ST_OFF}
v_mov_b32 v4, 0
v_cmp_eq_u32 vcc, 0, v2
s_and_saveexec_b64 s[56:57], vcc
buffer_store_dwordx4 v[16:19], v4, s[32:35], s50 offen
buffer_store_dwordx4 v[20:23], v4, s[32:35], s50 offen offset:16
buffer_store_dwordx4 v[24:27], v4, s[32:35], s50 offen offset:32
buffer_store_dwordx4 v[28:31], v4, s[32:35], s50 offen offset:48
s_endpgm
""")
    A.raw('.section .rodata,"a"')
    A.descriptor(KN, 168, 168)
    open(out, "w").write(A.text())
    import subprocess, re
    subprocess.run(["clang", "-x", "assembler", "-target", "amdgcn-amd-amdhsa", "-mcpu=gfx950", "-c", out, "-o", "_g.o"], check=True)
    d = subprocess.run(["llvm-objdump", "-d", "--mcpu=gfx950", "_g.o"], capture_output=True, text=True).stdout
    ad = {m.group(2): int(m.group(1), 16) for m in re.finditer(r"^([0-9a-f]+) <(\w+)>:", d, re.M)}
    if ad["L_aend"] + 0x300 > 4096: print("WARNING: first page overflow", out, hex(ad["L_aend"] + 0x300))
    if ad["L_fslow"] - ad["L_page"] > 4096: print("WARNING: main page overflow", out, ad["L_fslow"] - ad["L_page"])

if __name__ == "__main__":
    E = "exp/"
    V = {"a": dict(), "b_plain": dict(outflags=""), "c_dir": dict(tr=False), "d_dirplain": dict(tr=False, outflags=""), "e_m1": dict(ppos=-1), "f_p0": dict(ppos=0)}
    for k, v in V.items():
        gen(E+f"v20{k}.s", **v); gen(E+f"v20{k}_st.s", stamps=True, **v)
    print(" ".join(f"exp/v20{k}.s" for k in V)); print(", ".join(f'"exp/v20{k}.s"' for k in V))
```
